```python
import torch

def _softmax(x, axis=-1):
    return torch.softmax(x, dim=axis)
def _gelu(x):
    return torch.nn.functional.gelu(x, approximate="tanh")
def _silu(x):
    return torch.nn.functional.silu(x)
def _sigmoid(x):
    return torch.sigmoid(x)
def _layernorm(x, axis=-1, eps=1e-5):
    m = x.mean(dim=axis, keepdim=True)
    v = x.var(dim=axis, keepdim=True, unbiased=False)
    return (x - m) / torch.sqrt(v + eps)
def _scatter_add(tgt, idx, src, axis=0):
    return tgt.clone().index_add_(axis, idx, src)
def _segment_sum(src, seg, n):
    out = torch.zeros((n,) + src.shape[1:], dtype=src.dtype)
    return out.index_add_(0, seg, src)
def _pad(x, pw):
    flat = tuple(v for pair in reversed(pw) for v in pair)
    return torch.nn.functional.pad(x, flat)

kernel_name = 'recurrent_scan__mha_block__swiglu_ffn__prompt'

def setup_inputs():

    _w = (lambda a: (lambda t: t.to(torch.bfloat16) if t.is_floating_point() else t)(torch.as_tensor(a)))
    def _A_setup():
        B, S, D, H = 1, 2048, 512, 32
        return {
            "x": _w((lambda *s: torch.randn(*s, dtype=torch.bfloat16) * 0.05)(B, S, D)),
            "wqkv": _w((lambda *s: torch.randn(*s, dtype=torch.bfloat16) * 0.05)(D, 3 * D)),
            "wo": _w((lambda *s: torch.randn(*s, dtype=torch.bfloat16) * 0.05)(D, D)),
        }
    _A_in = _A_setup()

    def _B_setup():
        B, S, D, F = 1, 2048, 512, 1376
        return {
            "x": _w((lambda *s: torch.randn(*s, dtype=torch.bfloat16) * 0.05)(B, S, D)),
            "w_gate": _w((lambda *s: torch.randn(*s, dtype=torch.bfloat16) * 0.05)(D, F)),
            "w_up": _w((lambda *s: torch.randn(*s, dtype=torch.bfloat16) * 0.05)(D, F)),
            "w_down": _w((lambda *s: torch.randn(*s, dtype=torch.bfloat16) * 0.05)(F, D)),
        }
    _B_in = _B_setup()

    return {
        "A_x": _A_in["x"],
        "A_wqkv": _A_in["wqkv"],
        "A_wo": _A_in["wo"],
        "B_x": _B_in["x"],
        "B_w_gate": _B_in["w_gate"],
        "B_w_up": _B_in["w_up"],
        "B_w_down": _B_in["w_down"],
    }

def reference(A_x, A_wqkv, A_wo, B_x, B_w_gate, B_w_up, B_w_down):
    def _A_ref(x, wqkv, wo):
        B, S, D = x.shape
        H = 32
        Dh = D // H
        qkv = (lambda x, *d: x.permute(*d))((x @ wqkv).reshape(B, S, 3, H, Dh), 2, 0, 3, 1, 4)
        q, k, v = qkv[0], qkv[1], qkv[2]
        scores = torch.einsum("bhqd,bhkd->bhqk", q, k) * (Dh ** -0.5)
        p = _softmax(scores, axis=-1)
        o = torch.einsum("bhqk,bhkd->bhqd", p, v)
        return (lambda x, *d: x.permute(*d))(o, 0, 2, 1, 3).reshape(B, S, D) @ wo

    def _B_ref(x, w_gate, w_up, w_down):
        g = _silu(x @ w_gate)
        u = x @ w_up
        return (g * u) @ w_down

    x = A_x
    xn = _layernorm(x, axis=-1)
    s = _A_ref(xn, A_wqkv, A_wo)
    g = _silu(_B_ref(xn, B_w_gate, B_w_up, B_w_down))
    return x + s * g
```

```python
from emit import P, srd, check, trace

QF, KF, VF, OF, FF, HF = 0x0, 0x200000, 0x400000, 0x600000, 0x800000, 0xA00000
WS_SIZE = 0x1000000
LOG2E = 1.4426950408889634
QSCALE = 0.25 * LOG2E


def fbits(x):
    import struct
    return "0x%08x" % struct.unpack("<I", struct.pack("<f", x))[0]


def vr(a, n):
    return f"v[{a}:{a+n-1}]"


def tr_lane_base(p, dst, lane, stride, t0, t1, xor_half=False):
    p.e(f"""
v_lshrrev_b32 v{t0}, 5, v{lane}
v_bfe_u32 v{t1}, v{lane}, 2, 2
v_lshl_add_u32 v{t0}, v{t0}, 3, v{t1}
v_mul_u32_u24 v{dst}, {stride}, v{t0}
v_bfe_u32 v{t0}, v{lane}, 4, 1
v_lshl_add_u32 v{dst}, v{t0}, 5, v{dst}
v_and_b32 v{t0}, 1, v{lane}
v_lshl_add_u32 v{dst}, v{t0}, 4, v{dst}
v_bfe_u32 v{t0}, v{lane}, 1, 1
v_lshl_add_u32 v{dst}, v{t0}, 3, v{dst}
""")
    if xor_half:
        p.e(f"v_bfe_u32 v{t0}, v{lane}, 3, 1\nv_lshl_add_u32 v{dst}, v{t0}, 6, v{dst}")
```

```python
import re

TRANS = ("v_exp_f32", "v_log_f32", "v_rcp_f32", "v_rsq_f32", "v_sqrt_f32", "v_sin_f32", "v_cos_f32")
NODST_S = ("s_cmp", "s_waitcnt", "s_barrier", "s_branch", "s_cbranch", "s_nop", "s_setprio", "s_endpgm",
           "s_sleep", "s_bitcmp")


def regs(tok):
    tok = tok.strip()
    tok = tok.lstrip("-")
    m = re.fullmatch(r"(?:abs\(|\|)?([vas])\[(\d+):(\d+)\]\)?\|?", tok)
    if m:
        return [f"{m.group(1)}{i}" for i in range(int(m.group(2)), int(m.group(3)) + 1)]
    m = re.fullmatch(r"(?:abs\(|\|)?([vas])(\d+)\)?\|?", tok)
    if m:
        return [f"{m.group(1)}{m.group(2)}"]
    if tok == "vcc":
        return ["vcc"]
    if tok in ("exec", "exec_lo", "exec_hi"):
        return ["exec"]
    if tok == "m0":
        return ["m0"]
    return []


class Ins:
    def __init__(self, text):
        self.text = text
        t = text.split(";")[0].strip()
        self.label = t.endswith(":")
        self.op = t.split()[0] if t else ""
        rest = t[len(self.op):].strip()
        parts = [p.strip() for p in rest.split(",")] if rest else []
        mods = ""
        if parts:
            last = parts[-1].split()
            if last:
                parts[-1] = last[0]
                mods = " ".join(last[1:])
        self.parts, self.mods = parts, mods
        op = self.op
        R = [regs(p) for p in parts]
        flat = lambda l: [x for y in l for x in y]
        self.w, self.r = [], []
        self.kind = "other"
        if self.label or not op or op.startswith("."):
            self.kind = "none"
        elif op.startswith("v_mfma") or op.startswith("v_smfmac"):
            self.kind = "mfma"
            self.w = R[0]
            self.A, self.B = R[1], R[2]
            if op.startswith("v_smfmac"):
                self.C = R[0]
                self.B = self.B + R[3]
            else:
                self.C = R[3]
            self.r = self.A + self.B + self.C
            self.passes = 4 if "16x16" in op else 8
        elif op.startswith("ds_read") or op.startswith("ds_bpermute") or op.startswith("ds_swizzle"):
            self.kind = "lds"; self.w = R[0]; self.r = flat(R[1:])
        elif op.startswith("ds_"):
            self.kind = "lds"; self.r = flat(R)
        elif op.startswith("buffer_load") or op.startswith("global_load"):
            self.kind = "vmem"
            if "lds" in mods.split() or "lds" in op:
                self.r = flat(R) + ["m0"]; self.dma = True
            else:
                self.w = R[0]; self.r = flat(R[1:])
        elif op.startswith("buffer_store") or op.startswith("global_store"):
            self.kind = "vmem"; self.r = flat(R)
            self.sdata = (R[0] if op.startswith("buffer") else R[1]) if ("x4" in op or "x3" in op) else []
        elif op.startswith("buffer_atomic") or op.startswith("global_atomic"):
            self.kind = "vmem"; self.r = flat(R)
            if "sc0" in mods.split():
                self.w = R[0]
        elif op.startswith("buffer_") :
            self.kind = "vmem"
        elif op.startswith("v_"):
            self.kind = "valu"
            if op.startswith("v_permlane") and "swap" in op:
                self.w = R[0] + R[1]; self.r = R[0] + R[1]
            elif op == "v_nop":
                pass
            else:
                self.w = R[0]; self.r = flat(R[1:])
                if op.startswith(("v_fmac", "v_dot2c", "v_writelane")):
                    self.r += R[0]
                if op.startswith(("v_add_co", "v_addc_co", "v_sub_co")):
                    self.w += R[1]; self.r = flat(R[2:])
                if "dpp" in op or "row_" in mods or "quad_perm" in mods:
                    self.r += R[0]
        elif op.startswith("s_load") or op.startswith("s_memtime") or op.startswith("s_memrealtime") or op.startswith("s_atomic"):
            self.kind = "smem"; self.w = R[0]; self.r = flat(R[1:])
        elif op.startswith("s_"):
            self.kind = "salu"
            if op.startswith(NODST_S):
                self.r = flat(R)
            else:
                self.w = R[0]; self.r = flat(R[1:])
                if "saveexec" in op:
                    self.w += ["exec"]; self.r += ["exec"]
        self.trans = op.replace("_e32", "").replace("_e64", "") in TRANS
        self.dot = op.startswith("v_dot")
        self.dpp = self.kind == "valu" and ("dpp" in op or "row_" in mods or "quad_perm" in mods)

    def states(self):
        if self.kind == "none":
            return 0
        if self.op == "s_nop":
            return int(self.parts[0], 0) + 1
        return 1


def check(lines, name="", init_vm=None):
    ins = [Ins(l) for l in lines]
    bad = 0

    def rep(i, j, why):
        nonlocal bad
        bad += 1
        if bad < 25:
            print(f"[{name}] HAZARD {why}\n    producer {j}: {ins[j].text.strip()}\n    consumer {i}: {ins[i].text.strip()}")

    for i, c in enumerate(ins):
        if c.kind == "none":
            continue
        d = 0
        j = i - 1
        rs, ws = set(c.r), set(c.w)
        while j >= 0 and d < 20:
            p = ins[j]
            if p.kind == "none":
                j -= 1
                continue
            pw = set(p.w)
            if p.kind == "valu":
                vw = {x for x in pw if x[0] in "va" and x != "vcc"}
                sw = {x for x in pw if x[0] == "s" or x == "vcc"}
                if c.kind == "mfma" and vw & rs and d < (3 if p.dot else 2): rep(i, j, f"valu->mfma d={d}")
                if p.trans and c.kind == "valu" and not c.trans and vw & rs and d < 1: rep(i, j, "trans->valu")
                if c.kind == "valu" and c.op.startswith("v_permlane") and vw & rs and d < 2: rep(i, j, "valu->permlane")
                if c.dpp and vw & rs and d < 2: rep(i, j, "valu->dpp")
                if c.op.startswith(("v_readlane", "v_readfirstlane")) and vw & rs and d < 1: rep(i, j, "valu->readlane")
                if c.kind == "valu" and sw & rs and d < 2: rep(i, j, "valu sgpr->valu")
                if c.kind == "vmem" and sw & rs and d < 5: rep(i, j, "valu sgpr->vmem")
                if p.dot and not (c.op == p.op) and vw & (rs | ws) and d < 3: rep(i, j, "dot->other")
                if p.dot and c.op == p.op and vw & (set(regs(c.parts[1])) | set(regs(c.parts[2]))) and d < 3: rep(i, j, "dot->dot AB")
                if "exec" in pw and d < 5 and c.kind in ("mfma", "valu"): rep(i, j, "valu exec")
            if p.kind == "mfma":
                n = 12 if p.passes == 8 else 8
                if c.kind == "mfma":
                    if pw & (set(c.A) | set(c.B)) and d < n: rep(i, j, f"mfma D->AB d={d}")
                    if pw & set(c.C) and (c.C != p.w or c.passes != p.passes) and d < n - 2: rep(i, j, f"mfma D->C partial d={d}")
                elif c.kind in ("valu", "vmem", "lds"):
                    if pw & (rs | ws) and d < n: rep(i, j, f"mfma D->{c.kind} d={d}")
                    if c.kind == "valu" and set(p.C) & ws and d < (7 if p.passes == 8 else 3): rep(i, j, f"mfma C WAR d={d}")
            if p.kind == "vmem" and getattr(p, "sdata", None):
                if set(p.sdata) & ws and d < (2 if c.kind == "valu" else 1): rep(i, j, "store data WAR")
            if p.kind == "salu" and "m0" in pw and getattr(c, "dma", False) and d < 1: rep(i, j, "m0->dma")
            d += p.states()
            j -= 1

    vm, lg = [], []
    for i, c in enumerate(ins):
        if c.op == "s_waitcnt":
            t = c.text
            m = re.search(r"vmcnt\((\d+)\)", t)
            if m:
                n = int(m.group(1)); vm = vm[len(vm) - n:] if n < len(vm) else vm
                if n == 0: vm = []
            m = re.search(r"lgkmcnt\((\d+)\)", t)
            if m:
                n = int(m.group(1))
                if n and any(k == "smem" and not ins[j].op.startswith("s_mem") for k, _, j in lg): rep(i, lg[0][2], "counted lgkm with smem outstanding")
                lg = lg[len(lg) - n:] if n < len(lg) else lg
                if n == 0: lg = []
            continue
        touched = set(c.r) | set(c.w)
        for k, w, j in vm + lg:
            if touched & w:
                if c.kind == k and not (set(c.r) & w):
                    continue
                rep(i, j, "missing waitcnt")
        if c.kind == "vmem": vm.append(("vmem", set(c.w), i))
        if c.kind in ("lds", "smem") and not c.op.startswith("s_mem"): lg.append((c.kind, set(c.w), i))
        if len(vm) > 63: rep(i, vm[0][2], "vmcnt overflow")
    return bad


class P:
    def __init__(self):
        self.l = []
        self.vm = []
        self.lg = []

    def e(self, text, tag=None):
        for t in text.strip("\n").split("\n"):
            t = t.strip()
            if not t:
                continue
            self.l.append(t)
            op = t.split()[0]
            if op.startswith(("buffer_", "global_")): self.vm.append(tag)
            elif op.startswith(("ds_", "s_load", "s_mem")): self.lg.append(tag)
        return self

    def _n(self, q, tag):
        idx = [i for i, t in enumerate(q) if t == tag]
        if not idx:
            return None
        return len(q) - 1 - idx[-1]

    def wvm(self, tag, extra=""):
        n = self._n(self.vm, tag)
        if n is None:
            return
        assert n <= 63, n
        self.l.append(f"s_waitcnt vmcnt({n}){extra}")
        self.vm = self.vm[len(self.vm) - n:] if n else []

    def wlg(self, tag):
        n = self._n(self.lg, tag)
        if n is None:
            return
        n = min(n, 15)
        self.l.append(f"s_waitcnt lgkmcnt({n})")
        self.lg = self.lg[len(self.lg) - n:] if n else []

    def wall(self, vm=True, lg=True):
        s = "s_waitcnt" + (" vmcnt(0)" if vm else "") + (" lgkmcnt(0)" if lg else "")
        self.l.append(s)
        if vm: self.vm = []
        if lg: self.lg = []

    def text(self):
        return "\n".join(("" if x.endswith(":") else "    ") + x for x in self.l) + "\n"


def srd(p, d, lo, size, off=0):
    if off:
        p.e(f"s_add_u32 s{d}, s{lo}, {off}\ns_addc_u32 s{d+1}, s{lo+1}, 0\ns_and_b32 s{d+1}, s{d+1}, 0xffff")
    else:
        p.e(f"s_mov_b32 s{d}, s{lo}\ns_and_b32 s{d+1}, s{lo+1}, 0xffff")
    p.e(f"s_mov_b32 s{d+2}, {size}\ns_mov_b32 s{d+3}, 0x20000")


def trace(lines, taken=(), loops=None):
    loops = dict(loops or {})
    pos = {l[:-1]: i for i, l in enumerate(lines) if l.endswith(":")}
    out, i = [], 0
    while i < len(lines):
        l = lines[i]
        out.append(l)
        op = l.split()[0]
        if op == "s_endpgm":
            break
        if op == "s_branch" or op.startswith("s_cbranch"):
            t = l.split()[1]
            if op == "s_branch" or t in taken or loops.get(t, 0) > 0:
                if t in loops and op != "s_branch":
                    loops[t] -= 1
                if t not in pos:
                    break
                i = pos[t]
                continue
        i += 1
    return out
```

```python
from common import *

SLOT = 24576
XB0 = 24576
SCR = 152 * 1024
X, ACC, WF = 128, 32, 8
TB, RSTD, NB, T0, T1, T2 = 0, 3, 4, 5, 6, 7
D = 6
ST = "sc1"


def frag_addr(m):
    if m < 192:
        ks, t = divmod(m, 6)
        s, bi, tt = ks >> 2, 2 * (ks & 3) + (t >= 3), t % 3
    else:
        ks, tt = divmod(m - 192, 3)
        s, bi = 8 + (ks >> 3), ks & 7
    slot = s % 6
    return TB + (slot >> 1), (slot & 1) * SLOT + bi * 3072 + tt * 64


def reads(p, m):
    b, off = frag_addr(m)
    w = WF + 4 * (m % D)
    p.e(f"ds_read_b64_tr_b16 {vr(w,2)}, v{b} offset:{off}\nds_read_b64_tr_b16 {vr(w+2,2)}, v{b} offset:{off+768}", ("w", m))


def norm_ops(ks):
    o = []
    for i in range(4):
        r = X + 4 * ks + i
        o += [f"v_lshlrev_b32 v{T0}, 16, v{r}", f"v_and_b32 v{r}, s40, v{r}",
              f"v_fma_f32 v{T0}, v{T0}, v{RSTD}, v{NB}", f"v_fma_f32 v{r}, v{r}, v{RSTD}, v{NB}",
              f"v_cvt_pk_bf16_f32 v{r}, v{T0}, v{r}"]
    return o


def silu_ops():
    o = []
    for i in range(0, 48, 2):
        a, b = ACC + 48 + i, ACC + 49 + i
        o += [(1, f"v_mul_f32 v{T0}, s41, v{a}"), (1, f"v_mul_f32 v{T1}, s41, v{b}"),
              (2, f"v_exp_f32 v{T0}, v{T0}"), (2, f"v_exp_f32 v{T1}, v{T1}"),
              (1, f"v_add_f32 v{T0}, 1.0, v{T0}"), (1, f"v_add_f32 v{T1}, 1.0, v{T1}"),
              (2, f"v_rcp_f32 v{T0}, v{T0}"), (2, f"v_rcp_f32 v{T1}, v{T1}"),
              (1, f"v_mul_f32 v{a}, v{a}, v{T0}"), (1, f"v_mul_f32 v{b}, v{b}, v{T1}")]
    return o


def prologue(p):
    p.e(f"""
s_cmp_ge_u32 s2, 256
s_cbranch_scc1 K1_end
s_load_dwordx4 s[4:7], s[0:1], 0
s_load_dwordx4 s[8:11], s[0:1], 32
s_load_dwordx2 s[12:13], s[0:1], 72
v_lshrrev_b32 v1, 6, v0
v_and_b32 v0, 63, v0
s_and_b32 s15, s2, 7
s_lshr_b32 s16, s2, 3
v_readfirstlane_b32 s14, v1
s_and_b32 s17, s15, 3
s_lshl_b32 s17, s17, 2
s_and_b32 s18, s16, 3
s_add_u32 s17, s17, s18
s_lshr_b32 s18, s15, 2
s_lshl_b32 s18, s18, 3
s_lshr_b32 s19, s16, 2
s_add_u32 s18, s18, s19
s_cmp_ge_u32 s14, 4
s_cbranch_scc1 K1_loader
""")


def compute(p):
    L = 64
    p.e(f"""
v_mov_b32 v{L}, v0
s_lshl_b32 s19, s17, 2
s_add_u32 s19, s19, s14
s_lshl_b32 s20, s19, 15
s_lshl_b32 s21, s14, 15
s_add_u32 s21, s21, {XB0}
v_lshrrev_b32 v33, 3, v{L}
v_lshlrev_b32 v33, 10, v33
v_and_b32 v34, 7, v{L}
v_lshrrev_b32 v35, 4, v{L}
v_xor_b32 v34, v34, v35
v_lshl_add_u32 v36, v34, 4, v33
v_xor_b32 v37, 64, v36
v_add_u32 v37, 7168, v37
v_add_u32 v38, 14336, v36
v_add_u32 v39, 14336, v37
""")
    p.wall(vm=False)
    srd(p, 24, 4, 2097152)
    for c in range(8):
        p.e(f"s_mov_b32 m0, s21\ns_add_u32 s21, s21, 4096")
        for j in range(4):
            p.e(f"buffer_load_dwordx4 v{36+j}, s[24:27], s20 offen offset:{1024*j} lds", ("x", c))
        p.e("s_add_u32 s20, s20, 128")
    srd(p, 28, 12, WS_SIZE)
    p.e(f"""
s_mov_b32 s40, 0xffff0000
s_mov_b32 s41, {fbits(-LOG2E)}
s_mov_b32 s42, 0x3f803f80
s_lshl_b32 s21, s14, 15
s_add_u32 s21, s21, {XB0}
v_and_b32 v33, 31, v{L}
v_lshlrev_b32 v34, 7, v33
v_bfe_u32 v35, v33, 1, 3
v_lshrrev_b32 v33, 5, v{L}
v_xor_b32 v35, v35, v33
v_lshl_add_u32 v34, v35, 4, v34
v_add_u32 v40, s21, v34
v_xor_b32 v41, 32, v40
v_xor_b32 v42, 64, v40
v_xor_b32 v43, 96, v40
v_mov_b32 v44, 0
v_mov_b32 v45, 0
v_mov_b32 v46, 0
v_mov_b32 v47, 0
""")
    tr_lane_base(p, TB, L, 192, 33, 34)
    p.e(f"v_add_u32 v{TB+1}, {2*SLOT}, v{TB}\nv_add_u32 v{TB+2}, {4*SLOT}, v{TB}")

    def dots(c):
        for i in range(16):
            r = X + 16 * c + i
            p.e(f"v_dot2c_f32_bf16 v{44+(i&1)}, s42, v{r}\nv_dot2c_f32_bf16 v{46+(i&1)}, v{r}, v{r}")

    for c in range(8):
        p.wvm(("x", c))
        for q in range(4):
            p.e(f"ds_read_b128 {vr(X+16*c+4*q,4)}, v{40+q} offset:{4096*c}", ("xr", c))
        if c:
            p.wlg(("xr", c - 1))
            dots(c - 1)
    p.wlg(("xr", 7))
    p.e("s_barrier")
    for m in range(D):
        reads(p, m)
    dots(7)
    p.e(f"""
s_nop 2
v_add_f32 v44, v44, v45
v_add_f32 v46, v46, v47
v_mov_b32 v45, v44
v_mov_b32 v47, v46
s_nop 1
v_permlane32_swap_b32 v44, v45
v_permlane32_swap_b32 v46, v47
v_add_f32 v44, v44, v45
v_add_f32 v46, v46, v47
v_mul_f32 v44, {fbits(1/512)}, v44
v_mul_f32 v46, {fbits(1/512)}, v46
v_fma_f32 v46, -v44, v44, v46
v_max_f32 v46, 0, v46
v_add_f32 v46, {fbits(1e-5)}, v46
v_rsq_f32 v{RSTD}, v46
v_mov_b32 v{T2}, v{L}
v_mul_f32 v{NB}, v44, v{RSTD}
v_sub_f32 v{NB}, 0, v{NB}
""")
    nstream = [o for ks in range(32) for o in norm_ops(ks)]
    for o in nstream[:25]:
        p.e(o)

    def gap(m, fill):
        if m % 3 == 0:
            p.wlg(("w", m + 2))
        if m < 192:
            ks, t = divmod(m, 6)
        else:
            ks, t = divmod(m - 192, 3)
        a = ACC + 16 * t
        c = "0" if ks == 0 else vr(a, 16)
        p.e(f"v_mfma_f32_32x32x16_bf16 {vr(a,16)}, {vr(WF+4*(m%D),4)}, {vr(X+4*ks,4)}, {c}")
        if (m + D) % 24 == 0 and m + D < 288:
            p.e("s_barrier")
        if m + D < 288:
            reads(p, m + D)
        for f in fill:
            p.e(f)

    for ks in range(32):
        ops = nstream[20 * ks + 25:20 * ks + 45]
        cuts = [0, 4, 8, 11, 15, 18, 20]
        for t in range(6):
            gap(6 * ks + t, ops[cuts[t]:cuts[t + 1]])

    p.e(f"""
v_lshlrev_b32 v{RSTD}, 4, v{T2}
s_mul_i32 s20, s18, 3
s_lshl_b32 s22, s19, 10
s_lshl_b32 s23, s14, 11
s_add_u32 s23, s23, {SCR}
v_and_b32 v{T0}, 31, v{T2}
v_lshlrev_b32 v{T0}, 6, v{T0}
v_lshrrev_b32 v{T1}, 5, v{T2}
v_lshl_add_u32 v{T0}, v{T1}, 4, v{T0}
v_add_u32 v{T0}, s23, v{T0}
""")
    tr_lane_base(p, NB, T2, 64, T1, RSTD)
    p.e(f"""
v_add_u32 v{NB}, s23, v{NB}
v_bfe_u32 v{T1}, v{T2}, 4, 1
v_lshlrev_b32 v{T1}, 16, v{T1}
v_lshrrev_b32 v{RSTD}, 5, v{T2}
v_lshl_add_u32 v{T1}, v{RSTD}, 8, v{T1}
v_and_b32 v{RSTD}, 15, v{T2}
v_lshl_add_u32 v{T1}, v{RSTD}, 4, v{T1}
v_lshlrev_b32 v{RSTD}, 4, v{T2}
""")
    keep = list(p.lg)
    for i in range(3):
        a = ACC + 16 * i
        p.e(f"""
s_add_u32 s32, s20, {i}
s_lshl_b32 s33, s32, 17
s_add_u32 s33, s33, s22
s_add_u32 s34, s33, 0x10000
s_cmp_ge_u32 s32, 16
s_cbranch_scc1 K1_noscale{i}
""")
        for r in range(16):
            p.e(f"v_mul_f32 v{a+r}, {fbits(QSCALE)}, v{a+r}")
        p.e(f"K1_noscale{i}:")
        for hf in range(2):
            for r in range(4):
                p.e(f"v_cvt_pk_bf16_f32 v{a+8*hf+r}, v{a+8*hf+2*r}, v{a+8*hf+2*r+1}")
        p.e(f"""
s_cmp_ge_u32 s32, 32
s_cbranch_scc1 K1_vtile{i}
buffer_store_dwordx4 {vr(a,4)}, v{RSTD}, s[28:31], s33 offen {ST}
buffer_store_dwordx4 {vr(a+8,4)}, v{RSTD}, s[28:31], s34 offen {ST}
s_branch K1_tdone{i}
K1_vtile{i}:
ds_write_b128 v{T0}, {vr(a,4)}
ds_write_b128 v{T0}, {vr(a+8,4)} offset:32
s_waitcnt lgkmcnt(0)
ds_read_b64_tr_b16 {vr(a+4,2)}, v{NB}
ds_read_b64_tr_b16 {vr(a+6,2)}, v{NB} offset:256
ds_read_b64_tr_b16 {vr(a+12,2)}, v{NB} offset:1024
ds_read_b64_tr_b16 {vr(a+14,2)}, v{NB} offset:1280
s_waitcnt lgkmcnt(0)
buffer_store_dwordx4 {vr(a+4,4)}, v{T1}, s[28:31], s33 offen {ST}
buffer_store_dwordx4 {vr(a+12,4)}, v{T1}, s[28:31], s33 offen offset:512 {ST}
K1_tdone{i}:
""")
    p.lg = keep
    p.e("s_nop 1")

    ops = silu_ops()
    k = 0
    for m in range(192, 288):
        budget = 3 if m % 3 == 2 else 4
        fill = []
        while k < len(ops) and ops[k][0] <= budget:
            budget -= ops[k][0]; fill.append(ops[k][1]); k += 1
        gap(m, fill)
    for c, o in ops[k:]:
        p.e(o)

    p.e(f"""
s_mul_i32 s20, s18, 3
s_mul_i32 s22, s19, {86*1024}
s_add_u32 s22, s22, {HF}
s_lshl_b32 s23, s20, 11
s_add_u32 s22, s22, s23
s_nop 4
""")
    for i in range(3):
        a, g = ACC + 16 * i, ACC + 48 + 16 * i
        p.e(f"s_add_u32 s32, s20, {i}\ns_cmp_ge_u32 s32, 43\ns_cbranch_scc1 K1_end")
        for r in range(16):
            p.e(f"v_mul_f32 v{g+r}, v{g+r}, v{a+r}")
        for hf in range(2):
            for r in range(4):
                p.e(f"v_cvt_pk_bf16_f32 v{g+8*hf+r}, v{g+8*hf+2*r}, v{g+8*hf+2*r+1}")
        p.e(f"""
buffer_store_dwordx4 {vr(g,4)}, v{RSTD}, s[28:31], s22 offen {ST}
buffer_store_dwordx4 {vr(g+8,4)}, v{RSTD}, s[28:31], s22 offen offset:1024 {ST}
s_add_u32 s22, s22, 2048
""")
    p.e("s_endpgm")


def loader(p):
    p.e(f"""
K1_loader:
s_and_b32 s14, s14, 3
s_and_b32 s19, s14, 1
s_mul_i32 s20, s18, 192
""")
    p.wall(vm=False)
    p.e(f"""
s_cmp_eq_u32 s19, 0
s_cselect_b32 s24, s6, s8
s_cselect_b32 s25, s7, s9
s_cselect_b32 s26, 1572864, s26
s_cselect_b32 s21, 3072, s21
s_cbranch_scc1 K1_lsel
s_mov_b32 s26, 1409024
s_mov_b32 s21, 2752
K1_lsel:
s_and_b32 s25, s25, 0xffff
s_mov_b32 s27, 0x20000
""")
    srd(p, 28, 10, 1409024)
    for j in range(3):
        p.e(f"""
v_add_u32 v1, {64*j}, v0
v_mul_u32_u24 v2, 43691, v1
v_lshrrev_b32 v2, 19, v2
v_mul_u32_u24 v3, 12, v2
v_sub_u32 v3, v1, v3
v_lshlrev_b32 v3, 4, v3
v_subrev_u32 v3, {1024*j}, v3
v_mad_u32_u24 v{4+j}, v2, s21, v3
v_mul_u32_u24 v2, 2752, v2
v_add_u32 v{8+j}, v2, v3
""")
    p.e(f"""
s_lshl_b32 s22, s21, 4
s_lshr_b32 s23, s14, 1
s_mul_i32 s23, s23, s22
s_add_u32 s23, s23, s20
s_lshl_b32 s22, s22, 1
s_mul_i32 s33, s14, {16*2752}
s_add_u32 s33, s33, s20
s_mul_i32 s34, s14, 3072
""")

    def stage(s):
        for e in range(2):
            p.e(f"s_add_u32 m0, s34, {(s % 6) * SLOT + e * 4 * 3072}")
            if s < 8:
                p.e("s_nop 0")
                for j in range(3):
                    p.e(f"buffer_load_dwordx4 v{4+j}, s[24:27], s23 offen offset:{1024*j} lds", ("st", s))
                p.e("s_add_u32 s23, s23, s22")
            else:
                p.e("s_nop 0")
                for j in range(3):
                    p.e(f"buffer_load_dwordx4 v{8+j}, s[28:31], s33 offen offset:{1024*j} lds", ("st", s))
                p.e(f"s_add_u32 s33, s33, {4*16*2752}")

    stage(0)
    for s in range(12):
        p.wvm(("st", s))
        p.e("s_barrier")
        if s == 0:
            for t in range(1, 6):
                stage(t)
        elif 2 <= s <= 7:
            stage(s + 4)
    p.e("K1_end:\ns_endpgm")


def build():
    a, b, c = P(), P(), P()
    prologue(a)
    b.lg = list(a.lg); c.lg = list(a.lg)
    compute(b)
    loader(c)
    allp = a.l + b.l + c.l
    ns = [f"K1_noscale{i}" for i in range(3)]
    vt = [f"K1_vtile{i}" for i in range(3)]
    bad = check(trace(allp), "k1.q") + check(trace(allp, ns), "k1.k") + check(trace(allp, ns + vt), "k1.v")
    bad += check(trace(allp, ["K1_loader"]), "k1.loader")
    return a.text() + b.text() + c.text(), bad
```

```python
from common import *

NA, NB_ = 12, 20
NS = 4
RB = 65536
LDS = RB + 32 * 2304
OACC, S, Q, K, V = 0, 64, 96, 112, 128
IDX, LN16, VOFF, T0 = 160, 161, 162, 163
GACC, GH, GW = 0, 64, 128
GV0, GV1, GT0, GT1, GH1 = 164, 165, 166, 167, 168
LANE = 170
ST = "sc1"


def prologue(p):
    p.e(f"""
s_cmp_ge_u32 s2, 256
s_cbranch_scc1 K2_end
s_load_dwordx2 s[4:5], s[0:1], 48
s_load_dwordx2 s[12:13], s[0:1], 72
v_lshrrev_b32 v1, 6, v0
v_and_b32 v{LANE}, 63, v0
s_and_b32 s15, s2, 7
s_lshr_b32 s16, s2, 3
v_readfirstlane_b32 s14, v1
s_lshl_b32 s17, s15, 2
s_lshr_b32 s18, s16, 3
s_add_u32 s17, s17, s18
s_and_b32 s18, s16, 7
v_lshlrev_b32 v{LN16}, 4, v{LANE}
v_lshrrev_b32 v1, 5, v{LANE}
v_and_b32 v2, 15, v{LANE}
v_lshlrev_b32 v2, 4, v2
v_lshl_add_u32 v{VOFF}, v1, 8, v2
v_mov_b32 v{IDX}, 0xdddddddd
s_mov_b32 s44, 0xffff
s_mov_b32 s45, 0xffff
s_and_b32 s19, s14, 1
s_lshr_b32 s20, s14, 1
""")
    p.wall(vm=False)
    srd(p, 28, 12, WS_SIZE)
    srd(p, 24, 4, 1409024)
    p.e("s_cmp_ge_u32 s14, 4\ns_cbranch_scc1 K2_att")


def gphase(p):
    p.e(f"""
v_lshrrev_b32 v1, 3, v{LANE}
v_lshlrev_b32 v1, 10, v1
v_and_b32 v2, 7, v{LANE}
v_bfe_u32 v3, v{LANE}, 4, 1
v_lshlrev_b32 v3, 2, v3
v_xor_b32 v2, v2, v3
v_lshl_add_u32 v{GV0}, v2, 4, v1
v_add_u32 v{GV1}, 7168, v{GV0}
v_add_u32 v{GH1}, {86*1024}, v{LN16}
s_lshl_b32 s21, s14, 14
s_lshl_b32 s22, s18, 7
s_add_u32 s22, s22, s21
s_mul_i32 s23, s17, {2*86*1024}
s_lshl_b32 s32, s14, 10
s_add_u32 s23, s23, s32
s_add_u32 s23, s23, {HF}
""")
    tr_lane_base(p, GT0, LANE, 128, 1, 2, xor_half=True)
    p.e(f"v_add_u32 v{GT0}, s21, v{GT0}\nv_xor_b32 v{GT1}, 64, v{GT0}")

    def loads(i):
        sl = i % 8
        p.e(f"""
s_add_u32 m0, s21, {sl*2048}
buffer_load_dwordx4 {vr(GH+8*sl,4)}, v{LN16}, s[28:31], s23 offen
buffer_load_dwordx4 v{GV0}, s[24:27], s22 offen lds
buffer_load_dwordx4 v{GV1}, s[24:27], s22 offen offset:1024 lds
buffer_load_dwordx4 {vr(GH+8*sl+4,4)}, v{GH1}, s[28:31], s23 offen
s_add_u32 s22, s22, 65536
s_add_u32 s23, s23, 4096
""", ("g", i))

    def reads(i):
        sl, w = i % 8, GW + 8 * (i & 1)
        for ct in range(2):
            for q in range(2):
                p.e(f"ds_read_b64_tr_b16 {vr(w+4*ct+2*q,2)}, v{GT0+ct} offset:{sl*2048+q*512}", ("gr", i))

    N = 22
    for i in range(7):
        loads(i)
    p.wvm(("g", 0))
    reads(0)
    for i in range(N):
        if i + 1 < N:
            p.wvm(("g", i + 1))
            reads(i + 1)
        if i + 7 < N:
            loads(i + 7)
        p.wlg(("gr", i))
        if i == N - 1:
            p.e("s_cmp_ge_u32 s14, 2\ns_cbranch_scc1 K2_gdone")
        for tt in range(2):
            for ct in range(2):
                a = GACC + 16 * (2 * tt + ct)
                c = "0" if i == 0 else vr(a, 16)
                p.e(f"v_mfma_f32_32x32x16_bf16 {vr(a,16)}, {vr(GW+8*(i&1)+4*ct,4)}, {vr(GH+8*(i%8)+4*tt,4)}, {c}")
    p.e(f"K2_gdone:\nv_add_u32 v{T0}, s21, v{LN16}\ns_nop 10")
    for q in range(16):
        p.e(f"ds_write_b128 v{T0}, {vr(GACC+4*q,4)} offset:{1024*q}")


def kload(p, st):
    p.e(f"buffer_load_dwordx4 {vr(K+4*st,4)}, v{LN16}, s[28:31], s33 offen\ns_add_u32 s33, s33, 1024")


def vload(p, st):
    p.e(f"""
s_mov_b64 exec, s[44:45]
buffer_load_dwordx4 {vr(V+8*st,4)}, v{VOFF}, s[28:31], s34 offen
buffer_load_dwordx4 {vr(V+8*st+4,4)}, v{VOFF}, s[28:31], s34 offen offset:512
s_mov_b64 exec, -1
s_add_u32 s34, s34, 1024
""")


def attention(p):
    p.e(f"""
K2_att:
s_mul_i32 s32, s20, {NA}
s_cmp_eq_u32 s20, 3
s_cselect_b32 s33, {NB_-NA}, 0
s_add_u32 s32, s32, s33
s_cmp_ge_u32 s20, 2
s_cselect_b32 s35, {NB_//NS}, {NA//NS}
s_lshl_b32 s36, s17, 16
s_lshl_b32 s32, s32, 10
s_add_u32 s33, s36, s32
s_add_u32 s34, s33, {VF}
s_add_u32 s33, s33, {KF}
s_lshl_b32 s37, s18, 3
s_lshl_b32 s38, s19, 2
s_add_u32 s37, s37, s38
""")
    for j in range(4):
        p.e(f"""
s_add_u32 s38, s20, {j}
s_and_b32 s38, s38, 3
s_add_u32 s38, s38, s37
s_lshl_b32 s38, s38, 10
s_add_u32 s38, s38, s36
buffer_load_dwordx4 {vr(Q+4*j,4)}, v{LN16}, s[28:31], s38 offen
""")
    p.e("s_waitcnt lgkmcnt(0)")
    for r in range(8 * NS):
        p.e(f"v_mov_b32 v{V+r}, 0x3f803f80")
    for st in range(NS):
        kload(p, st)
        if st < NS - 1:
            vload(p, st)
    for r in range(64):
        p.e(f"v_mov_b32 v{OACC+r}, 0")
    E = lambda b, r: f"v_exp_f32 v{S+16*b+r}, v{S+16*b+r}"
    p.e(f"s_waitcnt vmcnt({3*NS-3-2})")
    p.e(f"v_mfma_f32_32x32x16_bf16 {vr(S,16)}, {vr(K,4)}, {vr(Q,4)}, 0")
    vload(p, NS - 1)
    p.e("s_nop 7")
    p.e(E(0, 0)); p.e(E(0, 1))
    p.e("K2_loop:")
    for i in range(4 * NS):
        st, t, b = i // 4, i % 4, i % 2
        n = i + 1
        nst, nt = (n // 4) % NS, n % 4
        for r in (2, 3, 4): p.e(E(b, r))
        if t == 3:
            p.e(f"s_waitcnt vmcnt({3*(NS-2)})")
        p.e(f"v_mfma_f32_32x32x16_bf16 {vr(S+16*(1-b),16)}, {vr(K+4*nst,4)}, {vr(Q+4*nt,4)}, 0")
        if t == 3:
            kload(p, st)
        for r in range(5, 10): p.e(E(b, r))
        p.e(f"v_smfmac_f32_32x32x32_bf16 {vr(OACC+16*t,16)}, {vr(V+8*st,4)}, {vr(S+16*b,8)}, v{IDX}")
        for r in range(10, 16): p.e(E(b, r))
        p.e(E(1 - b, 0)); p.e(E(1 - b, 1))
        p.e(f"v_smfmac_f32_32x32x32_bf16 {vr(OACC+16*t,16)}, {vr(V+8*st+4,4)}, {vr(S+16*b+8,8)}, v{IDX}")
        if t == 3:
            vload(p, st)
    p.e("s_sub_u32 s35, s35, 1\ns_cmp_lg_u32 s35, 0\ns_cbranch_scc1 K2_loop")


def finish(p):
    p.e(f"s_lshl_b32 s38, s19, 4\ns_add_u32 s38, s38, s20\nv_lshlrev_b32 v{T0+1}, 2, v{LANE}")
    p.e("s_nop 6")
    for j in range(1, 4):
        a = OACC + 16 * j
        p.e(f"""
s_add_u32 s39, s20, {j}
s_and_b32 s39, s39, 3
s_lshl_b32 s39, s39, 2
s_add_u32 s39, s39, s38
s_mul_i32 s39, s39, 2304
s_add_u32 s39, s39, {RB}
v_add_u32 v{T0}, s39, v{LN16}
v_add_u32 v{T0+2}, s39, v{T0+1}
ds_write_b128 v{T0}, {vr(a,4)}
ds_write_b128 v{T0}, {vr(a+4,4)} offset:1024
ds_write_b32 v{T0+2}, v{a+8} offset:2048
""")
    p.e("s_waitcnt vmcnt(0) lgkmcnt(0)\ns_barrier")
    p.vm, p.lg = [], []
    p.e(f"s_lshl_b32 s38, s19, 4\ns_lshl_b32 s39, s20, 2\ns_add_u32 s38, s38, s39")
    for d in range(1, 4):
        a = OACC + 16 * d
        p.e(f"""
s_add_u32 s39, s20, {d}
s_and_b32 s39, s39, 3
s_add_u32 s39, s39, s38
s_mul_i32 s39, s39, 2304
s_add_u32 s39, s39, {RB}
v_add_u32 v{T0}, s39, v{LN16}
v_add_u32 v{T0+2}, s39, v{T0+1}
ds_read_b128 {vr(a,4)}, v{T0}
ds_read_b128 {vr(a+4,4)}, v{T0} offset:1024
ds_read_b32 v{a+8}, v{T0+2} offset:2048
""", "o")
    p.e(f"s_lshl_b32 s39, s14, 11\nv_add_u32 v{T0}, s39, v{LN16}")
    for a in range(4):
        for q in range(2):
            p.e(f"ds_read_b128 {vr(S+8*a+4*q,4)}, v{T0} offset:{16384*a+1024*q}", ("f", a // 2))
    p.wlg("o")
    for r in range(9):
        p.e(f"v_add_f32 v{OACC+r}, v{OACC+r}, v{OACC+16+r}\nv_add_f32 v{OACC+32+r}, v{OACC+32+r}, v{OACC+48+r}")
    for r in range(9):
        p.e(f"v_add_f32 v{OACC+r}, v{OACC+r}, v{OACC+32+r}")
    p.wlg(("f", 1))
    for r in range(8):
        p.e(f"v_add_f32 v{S+r}, v{S+r}, v{S+8+r}\nv_add_f32 v{S+16+r}, v{S+16+r}, v{S+24+r}")
    for r in range(8):
        p.e(f"v_add_f32 v{S+r}, v{S+r}, v{S+16+r}")
    for r in range(4):
        p.e(f"v_cvt_pk_bf16_f32 v{S+r}, v{S+2*r}, v{S+2*r+1}")
    p.e(f"""
s_lshl_b32 s39, s17, 3
s_add_u32 s39, s39, s18
s_lshl_b32 s39, s39, 3
s_add_u32 s39, s39, s14
s_lshl_b32 s39, s39, 10
s_add_u32 s39, s39, {FF}
buffer_store_dwordx4 {vr(S,4)}, v{LN16}, s[28:31], s39 offen {ST}
""")
    p.e(f"v_max3_f32 v{T0}, abs(v{OACC}), abs(v{OACC+1}), abs(v{OACC+2})")
    p.e(f"v_max3_f32 v{T0}, v{T0}, abs(v{OACC+3}), abs(v{OACC+4})")
    p.e(f"v_max3_f32 v{T0}, v{T0}, abs(v{OACC+5}), abs(v{OACC+6})")
    p.e(f"""
v_max_f32 v{T0}, v{T0}, abs(v{OACC+7})
s_mov_b32 s40, {fbits(2.0**-60)}
s_mov_b32 s41, {fbits(2.0**60)}
s_mov_b32 s42, {fbits(2.0**126)}
v_cmp_le_f32 s[46:47], s40, v{OACC+8}
v_cmp_ge_f32 s[48:49], s41, v{OACC+8}
v_cmp_ge_f32 s[50:51], s42, v{T0}
s_nop 1
s_and_b64 s[46:47], s[46:47], s[48:49]
s_and_b64 s[46:47], s[46:47], s[50:51]
s_cmp_eq_u64 s[46:47], -1
s_cbranch_scc0 K2_slow
K2_store:
v_rcp_f32 v{T0}, v{OACC+8}
s_add_u32 s38, s37, s20
s_lshl_b32 s38, s38, 5
s_add_u32 s38, s38, s17
s_lshl_b32 s38, s38, 10
s_add_u32 s38, s38, {OF}
""")
    for r in range(8):
        p.e(f"v_mul_f32 v{OACC+r}, v{OACC+r}, v{T0}")
    for r in range(4):
        p.e(f"v_cvt_pk_bf16_f32 v{OACC+r}, v{OACC+2*r}, v{OACC+2*r+1}")
    p.e(f"buffer_store_dwordx4 {vr(OACC,4)}, v{LN16}, s[28:31], s38 offen {ST}\nK2_end:\ns_endpgm")


def slow(p):
    M = T0 + 3
    p.e(f"""
K2_slow:
s_add_u32 s33, s36, {KF}
s_mov_b32 s35, 64
v_mov_b32 v{M}, 0xff800000
K2_slow1:
""")
    kload(p, 0)
    p.e(f"s_waitcnt vmcnt(0)\nv_mfma_f32_32x32x16_bf16 {vr(S,16)}, {vr(K,4)}, {vr(Q,4)}, 0\ns_nop 11")
    for r in range(0, 16, 2):
        p.e(f"v_max3_f32 v{M}, v{M}, v{S+r}, v{S+r+1}")
    p.e(f"""
s_sub_u32 s35, s35, 1
s_cmp_lg_u32 s35, 0
s_cbranch_scc1 K2_slow1
v_mov_b32 v{T0}, v{M}
s_nop 1
v_permlane32_swap_b32 v{M}, v{T0}
v_max_f32 v{M}, v{M}, v{T0}
s_add_u32 s33, s36, {KF}
s_add_u32 s34, s36, {VF}
s_mov_b32 s35, 64
""")
    for r in range(16):
        p.e(f"v_mov_b32 v{OACC+r}, 0")
    p.e("K2_slow2:")
    kload(p, 0)
    vload(p, 0)
    p.e(f"s_waitcnt vmcnt(0)\nv_mfma_f32_32x32x16_bf16 {vr(S,16)}, {vr(K,4)}, {vr(Q,4)}, 0\ns_nop 11")
    for r in range(16):
        p.e(f"v_sub_f32 v{S+r}, v{S+r}, v{M}")
    for r in range(16):
        p.e(f"v_exp_f32 v{S+r}, v{S+r}")
    p.e(f"""
s_nop 1
v_smfmac_f32_32x32x32_bf16 {vr(OACC,16)}, {vr(V,4)}, {vr(S,8)}, v{IDX}
v_smfmac_f32_32x32x32_bf16 {vr(OACC,16)}, {vr(V+4,4)}, {vr(S+8,8)}, v{IDX}
s_sub_u32 s35, s35, 1
s_cmp_lg_u32 s35, 0
s_cbranch_scc1 K2_slow2
s_nop 11
s_branch K2_store
""")


def build():
    a = P()
    prologue(a)
    gphase(a)
    attention(a)
    finish(a)
    slow(a)
    lp = {"K2_loop": 1}
    bad = check(trace(a.l, [], lp), "k2.a") + check(trace(a.l, ["K2_gdone"], lp), "k2.a2")
    bad += check(trace(a.l, ["K2_att"], lp), "k2.b")
    bad += check(trace(a.l, ["K2_att", "K2_slow"], {"K2_slow1": 1, "K2_slow2": 1}), "k2.slow")
    return a.text(), bad
```

```python
from common import *

LDS = 65536 + 8 * 2048
ACC, O, W, F, XR = 0, 16, 80, 96, 104
LANE, LN16, GV0, GV1, GT, XO, T0 = 112, 113, 114, 115, 116, 117, 118


def build():
    p = P()
    p.e(f"""
s_cmp_ge_u32 s2, 256
s_cbranch_scc1 K3_end
s_load_dwordx2 s[4:5], s[0:1], 0
s_load_dwordx2 s[6:7], s[0:1], 16
s_load_dwordx2 s[8:9], s[0:1], 56
s_load_dwordx2 s[12:13], s[0:1], 72
v_lshrrev_b32 v1, 6, v0
v_and_b32 v{LANE}, 63, v0
s_and_b32 s15, s2, 7
s_lshr_b32 s16, s2, 3
v_readfirstlane_b32 s14, v1
s_lshl_b32 s17, s15, 2
s_lshr_b32 s18, s16, 3
s_add_u32 s17, s17, s18
s_and_b32 s18, s16, 7
v_lshlrev_b32 v{LN16}, 4, v{LANE}
v_lshrrev_b32 v1, 3, v{LANE}
v_lshlrev_b32 v1, 10, v1
v_and_b32 v2, 7, v{LANE}
v_bfe_u32 v3, v{LANE}, 4, 1
v_lshlrev_b32 v3, 2, v3
v_xor_b32 v2, v2, v3
v_lshl_add_u32 v{GV0}, v2, 4, v1
v_add_u32 v{GV1}, 7168, v{GV0}
s_and_b32 s19, s14, 1
s_bfe_u32 s20, s14, 0x10001
s_lshr_b32 s21, s14, 2
s_lshl_b32 s22, s14, 14
s_lshl_b32 s23, s18, 7
s_add_u32 s22, s22, s23
s_lshl_b32 s23, s14, 11
s_lshl_b32 s36, s17, 1
s_add_u32 s36, s36, s21
s_lshl_b32 s37, s36, 5
s_lshl_b32 s38, s19, 4
s_add_u32 s37, s37, s38
s_lshl_b32 s37, s37, 10
s_add_u32 s37, s37, {OF}
""")
    p.wall(vm=False)
    srd(p, 24, 6, 524288)
    srd(p, 28, 12, WS_SIZE)

    def wl(ks0, tag):
        p.e(f"""
s_add_u32 m0, s23, {ks0*2048}
s_add_u32 s39, s22, {ks0*16384}
buffer_load_dwordx4 v{GV0}, s[24:27], s39 offen lds
buffer_load_dwordx4 v{GV1}, s[24:27], s39 offen offset:1024 lds
""", tag)

    def ol(i0, tag):
        for i in range(i0, i0 + 4):
            p.e(f"buffer_load_dwordx4 {vr(O+4*i,4)}, v{LN16}, s[28:31], s37 offen offset:{1024*(i-i0)}", tag)
        p.e("s_add_u32 s37, s37, 4096")

    wl(0, "a"); wl(16, "a"); ol(0, "a"); ol(4, "a")
    wl(8, "b"); wl(24, "b"); ol(8, "b"); ol(12, "b")
    srd(p, 40, 4, 2097152)
    srd(p, 44, 8, 2097152)
    p.e(f"""
s_lshl_b32 s39, s17, 3
s_add_u32 s39, s39, s18
s_lshl_b32 s39, s39, 3
s_add_u32 s39, s39, s14
s_lshl_b32 s39, s39, 10
s_add_u32 s39, s39, {FF}
v_and_b32 v1, 31, v{LANE}
v_lshlrev_b32 v1, 10, v1
v_lshrrev_b32 v2, 5, v{LANE}
v_lshl_add_u32 v{XO}, v2, 4, v1
s_lshl_b32 s48, s36, 15
s_lshl_b32 s49, s18, 7
s_add_u32 s48, s48, s49
s_lshl_b32 s49, s20, 6
s_add_u32 s48, s48, s49
s_lshl_b32 s49, s19, 5
s_add_u32 s48, s48, s49
""")
    p.e(f"buffer_load_dwordx4 {vr(F,4)}, v{LN16}, s[28:31], s39 offen", "f")
    p.e(f"buffer_load_dwordx4 {vr(XR,4)}, v{XO}, s[40:43], s48 offen", "x")
    tr_lane_base(p, GT, LANE, 128, 1, 2, xor_half=True)
    p.e(f"""
s_lshl_b32 s49, s20, 6
s_lshl_b32 s50, s19, 5
s_or_b32 s49, s49, s50
v_xor_b32 v{GT}, s49, v{GT}
s_lshl_b32 s50, s19, 15
v_add_u32 v{GT}, s50, v{GT}
s_mov_b32 s50, 0xffff0000
s_mov_b32 s51, {fbits(-LOG2E)}
""")

    def reads(i):
        w = W + 4 * (i % 4)
        p.e(f"ds_read_b64_tr_b16 {vr(w,2)}, v{GT} offset:{i*2048}\nds_read_b64_tr_b16 {vr(w+2,2)}, v{GT} offset:{i*2048+512}", ("r", i))

    p.wvm("a")
    p.e("s_barrier")
    for i in range(3):
        reads(i)
    for i in range(16):
        if i + 3 == 8:
            p.wvm("b")
            p.e("s_barrier")
        if i + 3 < 16:
            reads(i + 3)
        p.wlg(("r", i))
        p.e(f"v_mfma_f32_32x32x16_bf16 {vr(ACC,16)}, {vr(W+4*(i%4),4)}, {vr(O+4*i,4)}, {'0' if i == 0 else vr(ACC,16)}")
    G, XF = O, O + 8
    p.wvm("x")
    for r in range(4):
        p.e(f"v_lshlrev_b32 v{G+2*r}, 16, v{F+r}\nv_and_b32 v{G+2*r+1}, s50, v{F+r}")
    for r in range(8):
        p.e(f"v_mul_f32 v{XF+r}, s51, v{G+r}")
    p.e(f"s_add_u32 s39, s23, 65536\nv_add_u32 v{T0}, s39, v{LN16}\nv_xor_b32 v{T0+1}, 2048, v{T0}")
    p.e(f"ds_write_b128 v{T0}, {vr(ACC+8,4)}\nds_write_b128 v{T0}, {vr(ACC+12,4)} offset:1024")
    for r in range(8):
        p.e(f"v_exp_f32 v{XF+r}, v{XF+r}")
    p.e("s_waitcnt lgkmcnt(0)\ns_barrier")
    p.lg = []
    p.e(f"ds_read_b128 {vr(ACC+8,4)}, v{T0+1}\nds_read_b128 {vr(ACC+12,4)}, v{T0+1} offset:1024")
    for r in range(8):
        p.e(f"v_add_f32 v{XF+r}, 1.0, v{XF+r}")
    for r in range(8):
        p.e(f"v_rcp_f32 v{XF+r}, v{XF+r}")
    for r in range(8):
        p.e(f"v_mul_f32 v{G+r}, v{G+r}, v{XF+r}")
    for r in range(4):
        p.e(f"v_lshlrev_b32 v{XF+2*r}, 16, v{XR+r}\nv_and_b32 v{XF+2*r+1}, s50, v{XR+r}")
    p.wall(vm=False)
    for r in range(8):
        p.e(f"v_add_f32 v{ACC+r}, v{ACC+r}, v{ACC+8+r}")
    for r in range(8):
        p.e(f"v_fma_f32 v{ACC+r}, v{ACC+r}, v{G+r}, v{XF+r}")
    for r in range(4):
        p.e(f"v_cvt_pk_bf16_f32 v{ACC+r}, v{ACC+2*r}, v{ACC+2*r+1}")
    p.e(f"buffer_store_dwordx4 {vr(ACC,4)}, v{XO}, s[44:47], s48 offen\nK3_end:\ns_endpgm")
    return p.text(), check(trace(p.l), "k3")
```

```python
import sys, importlib
import k1, k2, k3

NAME = "recurrent_scan__mha_block__swiglu_ffn__prompt"

def kernel(label, body):
    return f".globl {label}\n.p2align 8\n.type {label},@function\n{label}:\n{body}"

def desc(label, vgpr, sgpr=96):
    acc = (vgpr + 3) // 4 * 4
    return f""".amdhsa_kernel {label}
  .amdhsa_next_free_vgpr {vgpr}
  .amdhsa_next_free_sgpr {sgpr}
  .amdhsa_accum_offset {acc}
  .amdhsa_group_segment_fixed_size 0
  .amdhsa_kernarg_size 80
  .amdhsa_user_sgpr_count 2
  .amdhsa_user_sgpr_kernarg_segment_ptr 1
  .amdhsa_system_sgpr_workgroup_id_x 1
.end_amdhsa_kernel
"""

def main(out):
    ref = open(f"cdna_kernels/{NAME}.s.ref").read().splitlines()
    head = [l for l in ref if l.startswith(";") and "@launch" not in l and "Override" not in l and "grid=ceil" not in l]
    parts = [("k1_kernel", k1, 163840, 256), ("k2_kernel", k2, k2.LDS, 176), ("k3_kernel", k3, k3.LDS, 128)]
    txt = "\n".join(head) + "\n"
    for label, m, lds, v in parts:
        txt += f"; @launch kernel={label} grid=(256,1,1) block=(512,1,1) lds={lds}\n"
    txt += '.amdgcn_target "amdgcn-amd-amdhsa--gfx950"\n.text\n'
    bad = 0
    for label, m, lds, v in parts:
        b, n = m.build()
        bad += n
        txt += kernel(label, b)
    txt += '.section .rodata,"a"\n'
    for label, m, lds, v in parts:
        txt += ".p2align 6\n" + desc(label, v)
    open(out, "w").write(txt)
    print("written", out, len(txt), "bytes; checker problems:", bad)

if __name__ == "__main__":
    main(sys.argv[1] if len(sys.argv) > 1 else f"cdna_kernels/{NAME}.s")
```

```python
from emit import P, srd, check, trace

QF, KF, VF, OF, FF, HF = 0x0, 0x200000, 0x400000, 0x600000, 0x800000, 0xA00000
WS_SIZE = 0x1000000
LOG2E = 1.4426950408889634
QSCALE = 0.25 * LOG2E


def fbits(x):
    import struct
    return "0x%08x" % struct.unpack("<I", struct.pack("<f", x))[0]


def vr(a, n):
    return f"v[{a}:{a+n-1}]"


def tr_lane_base(p, dst, lane, stride, t0, t1, xor_half=False):
    p.e(f"""
v_lshrrev_b32 v{t0}, 5, v{lane}
v_bfe_u32 v{t1}, v{lane}, 2, 2
v_lshl_add_u32 v{t0}, v{t0}, 3, v{t1}
v_mul_u32_u24 v{dst}, {stride}, v{t0}
v_bfe_u32 v{t0}, v{lane}, 4, 1
v_lshl_add_u32 v{dst}, v{t0}, 5, v{dst}
v_and_b32 v{t0}, 1, v{lane}
v_lshl_add_u32 v{dst}, v{t0}, 4, v{dst}
v_bfe_u32 v{t0}, v{lane}, 1, 1
v_lshl_add_u32 v{dst}, v{t0}, 3, v{dst}
""")
    if xor_half:
        p.e(f"v_bfe_u32 v{t0}, v{lane}, 3, 1\nv_lshl_add_u32 v{dst}, v{t0}, 6, v{dst}")


import os
STAMPS = os.environ.get("STAMPS", "0") == "1"
STAMP_OFF = 0x1800000


SSET = os.environ.get("SSET", "main")


def stamp(p, i, sset="main"):
    if STAMPS and (sset == SSET or i == 0 or sset == "any"):
        op = "s_memtime" if os.environ.get("CYC") == "1" else "s_memrealtime"
        p.l.append(f"{op} s[{64+2*i}:{65+2*i}]")


def stamp_out(p, kernel, n, wave="s14", ws=12):
    if not STAMPS:
        return
    p.l.append("s_waitcnt vmcnt(0) lgkmcnt(0)")
    stamp(p, n, "any")
    p.l.append("s_waitcnt lgkmcnt(0)")
    p.e(f"""
s_lshl_b32 s60, s2, 3
s_add_u32 s60, s60, {wave}
s_lshl_b32 s60, s60, 6
s_add_u32 s60, s60, {STAMP_OFF + kernel * 0x20000}
s_add_u32 s62, s{ws}, s60
s_addc_u32 s63, s{ws+1}, 0
v_mov_b32 v1, 0
""")
    for i in range(n + 1):
        p.e(f"v_mov_b32 v2, s{64+2*i}\nglobal_store_dword v1, v2, s[62:63] offset:{4*i}")
```

```python
from common import *
import os

CFG = dict(NA=12, NB=20, PRIO=1, ZROWS=1, GDEPTH=7, CODEPF=1, WPF=1)
for _k in CFG:
    if _k in os.environ:
        CFG[_k] = int(os.environ[_k])

FL1, FL2, FL3 = 0xF80000, 0xF90000, 0xFA0000
SPIN = 60000
ST = "sc1"
LD = "sc1"

X_, WQKV_, WO_, GATE_, UP_, DOWN_, OUT_, DBG_, WS_ = 4, 6, 8, 12, 14, 16, 18, 20, 22
WAVE, RBK, CG, HEAD, QB, ROT, TT = 24, 25, 26, 27, 28, 29, 30
SWS, SA, SB, SC, SD = 40, 44, 48, 52, 56
MASKHI, NLOG2E, ONES, QH, KQ = 60, 61, 62, 63, 31
VEXEC, CNT, QT0 = 96, 98, 99

SLOT, XB0, XW, SCR, LWORD = 24576, 49152, 24576, 152 * 1024, 148 * 1024
X, ACC, WF = 128, 32, 8
TB, RSTD, NB, T0, T1, T2 = 0, 3, 4, 5, 6, 7
D = 6
NS = 4
RB, GB, EX = 0, 65536, 131072
OACC, S, Q, K, V = 0, 64, 96, 112, 128
IDX, LN16, VOFF, LANE, U0 = 160, 161, 162, 163, 164
WO, XR, XO = 176, 240, 244
GACC, GH, GW = 16, 80, 144
LDS = 163840


def srdn(p, d, lo, size, off_sreg=None, off=0):
    if off_sreg is None:
        return srd(p, d, lo, size, off)
    p.e(f"s_add_u32 s{d}, s{off_sreg}, {off}\ns_add_u32 s{d}, s{d}, s{lo}\ns_addc_u32 s{d+1}, s{lo+1}, 0\n"
        f"s_and_b32 s{d+1}, s{d+1}, 0xffff\ns_mov_b32 s{d+2}, {size}\ns_mov_b32 s{d+3}, 0x20000")


def poll(p, name, vaddr, vtmp, srdreg, want, cmp="eq"):
    p.e(f"""
s_mov_b32 s{CNT}, {SPIN}
{name}:
buffer_load_dword v{vtmp}, v{vaddr}, s[{srdreg}:{srdreg+3}], 0 offen sc1
s_waitcnt vmcnt(0)
v_cmp_{cmp}_u32 vcc, {want}, v{vtmp}
s_sub_u32 s{CNT}, s{CNT}, 1
s_cmp_eq_u64 vcc, -1
s_cbranch_scc1 {name}_ok
s_cmp_lg_u32 s{CNT}, 0
s_cbranch_scc1 {name}
{name}_ok:
""")
    p.vm = []


def flag(p, soff, v0, v1):
    p.e(f"""
v_mov_b32 v{v0}, 0
v_mov_b32 v{v1}, 1
s_mov_b64 exec, 1
buffer_store_dword v{v1}, v{v0}, s[{SWS}:{SWS+3}], s{soff} offen sc1
s_mov_b64 exec, -1
""")


def entry(p):
    p.e("PK_start:\ns_cmp_ge_u32 s2, 256\ns_cbranch_scc1 PK_end")
    stamp(p, 0)
    p.e(f"""
s_load_dwordx16 s[4:19], s[0:1], 0
s_load_dwordx4 s[20:23], s[0:1], 64
v_lshrrev_b32 v1, 6, v0
v_and_b32 v0, 63, v0
s_and_b32 s32, s2, 7
s_lshr_b32 s33, s2, 3
v_readfirstlane_b32 s{WAVE}, v1
s_and_b32 s{RBK}, s32, 3
s_lshl_b32 s{RBK}, s{RBK}, 2
s_and_b32 s34, s33, 3
s_add_u32 s{RBK}, s{RBK}, s34
s_lshr_b32 s{CG}, s32, 2
s_lshl_b32 s{CG}, s{CG}, 3
s_lshr_b32 s35, s33, 2
s_add_u32 s{CG}, s{CG}, s35
s_lshl_b32 s34, s34, 1
s_add_u32 s{ROT}, s34, s35
s_and_b32 s{ROT}, s{ROT}, 7
s_lshl_b32 s{HEAD}, s32, 2
s_lshr_b32 s34, s33, 3
s_add_u32 s{HEAD}, s{HEAD}, s34
s_and_b32 s{QB}, s33, 7
s_and_b32 s{QH}, s{WAVE}, 1
s_lshr_b32 s{KQ}, s{WAVE}, 1
s_mov_b32 s{MASKHI}, 0xffff0000
s_mov_b32 s{NLOG2E}, {fbits(-LOG2E)}
s_mov_b32 s{ONES}, 0x3f803f80
s_mov_b32 s{VEXEC}, 0xffff
s_mov_b32 s{VEXEC+1}, 0xffff
s_cmp_ge_u32 s{WAVE}, 4
s_cbranch_scc1 PK_loader
""")


def frag_addr(m):
    if m < 192:
        ks, t = divmod(m, 6)
        s, bi, tt = ks >> 2, 2 * (ks & 3) + (t >= 3), t % 3
    else:
        ks, tt = divmod(m - 192, 3)
        s, bi = 8 + (ks >> 3), ks & 7
    slot = s % 6
    return TB + (slot >> 1), (slot & 1) * SLOT + bi * 3072 + tt * 64


def reads(p, m):
    b, off = frag_addr(m)
    w = WF + 4 * (m % D)
    p.e(f"ds_read_b64_tr_b16 {vr(w,2)}, v{b} offset:{off}\nds_read_b64_tr_b16 {vr(w+2,2)}, v{b} offset:{off+768}", ("w", m))


def norm_ops(ks):
    o = []
    for i in range(4):
        r = X + 4 * ks + i
        o += [f"v_lshlrev_b32 v{T0}, 16, v{r}", f"v_and_b32 v{r}, s{MASKHI}, v{r}",
              f"v_fma_f32 v{T0}, v{T0}, v{RSTD}, v{NB}", f"v_fma_f32 v{r}, v{r}, v{RSTD}, v{NB}",
              f"v_cvt_pk_bf16_f32 v{r}, v{T0}, v{r}"]
    return o


def silu_ops():
    o = []
    for i in range(0, 48, 2):
        a, b = ACC + 48 + i, ACC + 49 + i
        o += [(1, f"v_mul_f32 v{T0}, s{NLOG2E}, v{a}"), (1, f"v_mul_f32 v{T1}, s{NLOG2E}, v{b}"),
              (2, f"v_exp_f32 v{T0}, v{T0}"), (2, f"v_exp_f32 v{T1}, v{T1}"),
              (1, f"v_add_f32 v{T0}, 1.0, v{T0}"), (1, f"v_add_f32 v{T1}, 1.0, v{T1}"),
              (2, f"v_rcp_f32 v{T0}, v{T0}"), (2, f"v_rcp_f32 v{T1}, v{T1}"),
              (1, f"v_mul_f32 v{a}, v{a}, v{T0}"), (1, f"v_mul_f32 v{b}, v{b}, v{T1}")]
    return o


def compute(p):
    L = 64
    p.e(f"""
v_mov_b32 v{L}, v0
s_lshl_b32 s{TT}, s{RBK}, 2
s_add_u32 s{TT}, s{TT}, s{WAVE}
s_lshl_b32 s32, s{TT}, 15
s_mul_i32 s33, s{WAVE}, {XW}
s_add_u32 s33, s33, {XB0}
s_lshl_b32 s34, s{ROT}, 7
v_lshrrev_b32 v33, 3, v{L}
v_lshlrev_b32 v33, 10, v33
v_and_b32 v34, 7, v{L}
v_lshrrev_b32 v35, 4, v{L}
v_xor_b32 v34, v34, v35
v_lshl_add_u32 v36, v34, 4, v33
v_xor_b32 v37, 64, v36
v_add_u32 v37, 7168, v37
v_add_u32 v38, 14336, v36
v_add_u32 v39, 14336, v37
""")
    p.wall(vm=False)
    stamp(p, 1, "start")
    srd(p, SA, X_, 2097152)

    def xdma(c):
        p.e(f"s_add_u32 m0, s33, {(c % 6) * 4096}\ns_add_u32 s35, s32, s34")
        for j in range(4):
            p.e(f"buffer_load_dwordx4 v{36+j}, s[{SA}:{SA+3}], s35 offen offset:{1024*j} lds", ("x", c))
        p.e("s_add_u32 s34, s34, 128\ns_and_b32 s34, s34, 0x380")

    for c in range(6):
        xdma(c)
    stamp(p, 2, "start")
    srd(p, SWS, WS_, WS_SIZE)
    p.e(f"""
v_and_b32 v33, 31, v{L}
v_lshlrev_b32 v34, 7, v33
v_bfe_u32 v35, v33, 1, 3
v_lshrrev_b32 v33, 5, v{L}
v_xor_b32 v35, v35, v33
v_lshl_add_u32 v34, v35, 4, v34
v_add_u32 v40, s33, v34
v_xor_b32 v41, 32, v40
v_xor_b32 v42, 64, v40
v_xor_b32 v43, 96, v40
v_mov_b32 v44, 0
v_mov_b32 v45, 0
v_mov_b32 v46, 0
v_mov_b32 v47, 0
""")
    tr_lane_base(p, TB, L, 192, 33, 34)
    p.e(f"v_add_u32 v{TB+1}, {2*SLOT}, v{TB}\nv_add_u32 v{TB+2}, {4*SLOT}, v{TB}")

    def dots(c):
        for i in range(16):
            r = X + 16 * c + i
            p.e(f"v_dot2c_f32_bf16 v{44+(i&1)}, s{ONES}, v{r}\nv_dot2c_f32_bf16 v{46+(i&1)}, v{r}, v{r}")

    for c in range(8):
        p.wvm(("x", c))
        stamp(p, 3 + c, "start")
        for q in range(4):
            p.e(f"ds_read_b128 {vr(X+16*c+4*q,4)}, v{40+q} offset:{4096*(c%6)}", ("xr", c))
        if c < 2:
            p.wlg(("xr", c))
            xdma(c + 6)
        if c:
            p.wlg(("xr", c - 1))
            dots(c - 1)
    p.wlg(("xr", 7))
    stamp(p, 1)
    p.e("s_barrier")
    stamp(p, 11, "start")
    for m in range(D):
        reads(p, m)
    dots(7)
    p.e(f"""
s_nop 2
v_add_f32 v44, v44, v45
v_add_f32 v46, v46, v47
v_mov_b32 v45, v44
v_mov_b32 v47, v46
s_nop 1
v_permlane32_swap_b32 v44, v45
v_permlane32_swap_b32 v46, v47
v_add_f32 v44, v44, v45
v_add_f32 v46, v46, v47
v_mul_f32 v44, {fbits(1/512)}, v44
v_mul_f32 v46, {fbits(1/512)}, v46
v_fma_f32 v46, -v44, v44, v46
v_max_f32 v46, 0, v46
v_add_f32 v46, {fbits(1e-5)}, v46
v_rsq_f32 v{RSTD}, v46
v_mov_b32 v{T2}, v{L}
v_mul_f32 v{NB}, v44, v{RSTD}
v_sub_f32 v{NB}, 0, v{NB}
""")
    nstream = [o for ks in range(32) for o in norm_ops(ks)]
    for o in nstream[:25]:
        p.e(o)
    stamp(p, 2)

    def gap(m, fill):
        if m % 3 == 0:
            p.wlg(("w", m + 2))
        ks, t = divmod(m, 6) if m < 192 else divmod(m - 192, 3)
        a = ACC + 16 * t
        c = "0" if ks == 0 else vr(a, 16)
        p.e(f"v_mfma_f32_32x32x16_bf16 {vr(a,16)}, {vr(WF+4*(m%D),4)}, {vr(X+4*ks,4)}, {c}")
        if (m + D) % 24 == 0 and m + D < 288:
            if m + D == 240:
                p.wall(lg=False)
            p.e("s_barrier")
        if m + D < 288:
            reads(p, m + D)
        for f in fill:
            p.e(f)

    for ks in range(32):
        ops = nstream[20 * ks + 25:20 * ks + 45]
        cuts = [0, 4, 8, 11, 15, 18, 20]
        for t in range(6):
            gap(6 * ks + t, ops[cuts[t]:cuts[t + 1]])

    stamp(p, 3)
    p.e(f"""
s_mul_i32 s32, s{CG}, 3
s_lshl_b32 s33, s{TT}, 10
s_lshl_b32 s34, s{WAVE}, 11
s_add_u32 s34, s34, {SCR}
v_and_b32 v{T0}, 31, v{T2}
v_lshlrev_b32 v{T0}, 6, v{T0}
v_lshrrev_b32 v{T1}, 5, v{T2}
v_lshl_add_u32 v{T0}, v{T1}, 4, v{T0}
v_add_u32 v{T0}, s34, v{T0}
""")
    tr_lane_base(p, NB, T2, 64, T1, RSTD)
    p.e(f"""
v_add_u32 v{NB}, s34, v{NB}
v_bfe_u32 v{T1}, v{T2}, 4, 1
v_lshlrev_b32 v{T1}, 16, v{T1}
v_lshrrev_b32 v{RSTD}, 5, v{T2}
v_lshl_add_u32 v{T1}, v{RSTD}, 8, v{T1}
v_and_b32 v{RSTD}, 15, v{T2}
v_lshl_add_u32 v{T1}, v{RSTD}, 4, v{T1}
v_lshlrev_b32 v{RSTD}, 4, v{T2}
""")
    keep = list(p.lg)
    for i in range(3):
        a = ACC + 16 * i
        p.e(f"""
s_add_u32 s35, s32, {i}
s_lshl_b32 s36, s35, 17
s_add_u32 s36, s36, s33
s_add_u32 s37, s36, 0x10000
s_cmp_ge_u32 s35, 16
s_cbranch_scc1 PK_noscale{i}
""")
        for r in range(16):
            p.e(f"v_mul_f32 v{a+r}, {fbits(QSCALE)}, v{a+r}")
        p.e(f"PK_noscale{i}:")
        for hf in range(2):
            for r in range(4):
                p.e(f"v_cvt_pk_bf16_f32 v{a+8*hf+r}, v{a+8*hf+2*r}, v{a+8*hf+2*r+1}")
        p.e(f"""
s_cmp_ge_u32 s35, 32
s_cbranch_scc1 PK_vtile{i}
buffer_store_dwordx4 {vr(a,4)}, v{RSTD}, s[{SWS}:{SWS+3}], s36 offen {ST}
buffer_store_dwordx4 {vr(a+8,4)}, v{RSTD}, s[{SWS}:{SWS+3}], s37 offen {ST}
s_branch PK_tdone{i}
PK_vtile{i}:
ds_write_b128 v{T0}, {vr(a,4)}
ds_write_b128 v{T0}, {vr(a+8,4)} offset:32
s_waitcnt lgkmcnt(0)
ds_read_b64_tr_b16 {vr(a+4,2)}, v{NB}
ds_read_b64_tr_b16 {vr(a+6,2)}, v{NB} offset:256
ds_read_b64_tr_b16 {vr(a+12,2)}, v{NB} offset:1024
ds_read_b64_tr_b16 {vr(a+14,2)}, v{NB} offset:1280
s_waitcnt lgkmcnt(0)
buffer_store_dwordx4 {vr(a+4,4)}, v{T1}, s[{SWS}:{SWS+3}], s36 offen {ST}
buffer_store_dwordx4 {vr(a+12,4)}, v{T1}, s[{SWS}:{SWS+3}], s36 offen offset:512 {ST}
PK_tdone{i}:
""")
    p.lg = keep
    p.e("s_nop 1")
    stamp(p, 4)

    ops = silu_ops()
    k = 0
    for m in range(192, 288):
        budget = 3 if m % 3 == 2 else 4
        fill = []
        while k < len(ops) and ops[k][0] <= budget:
            budget -= ops[k][0]; fill.append(ops[k][1]); k += 1
        gap(m, fill)
    for c, o in ops[k:]:
        p.e(o)

    p.e(f"""
s_mul_i32 s33, s{TT}, {86*1024}
s_add_u32 s33, s33, {HF}
s_lshl_b32 s34, s32, 11
s_add_u32 s33, s33, s34
s_nop 5
""")
    for i in range(3):
        a, g = ACC + 16 * i, ACC + 48 + 16 * i
        p.e(f"s_add_u32 s35, s32, {i}\ns_cmp_ge_u32 s35, 43\ns_cbranch_scc1 PK_hdone")
        for r in range(16):
            p.e(f"v_mul_f32 v{g+r}, v{g+r}, v{a+r}")
        for hf in range(2):
            for r in range(4):
                p.e(f"v_cvt_pk_bf16_f32 v{g+8*hf+r}, v{g+8*hf+2*r}, v{g+8*hf+2*r+1}")
        p.e(f"""
buffer_store_dwordx4 {vr(g,4)}, v{RSTD}, s[{SWS}:{SWS+3}], s33 offen {ST}
buffer_store_dwordx4 {vr(g+8,4)}, v{RSTD}, s[{SWS}:{SWS+3}], s33 offen offset:1024 {ST}
s_add_u32 s33, s33, 2048
""")
    p.e(f"PK_hdone:\nv_mov_b32 v{LANE}, v{T2}")
    stamp(p, 5)
    p.e("s_barrier")
    if CFG["PRIO"]:
        p.e("s_setprio 2")
    att_issue(p)
    p.e("s_branch PK_join")


def wo_voffsets(p, d, lane, t0, t1, t2):
    p.e(f"""
v_lshrrev_b32 v{t0}, 3, v{lane}
v_lshlrev_b32 v{t0}, 10, v{t0}
v_and_b32 v{t1}, 7, v{lane}
v_bfe_u32 v{t2}, v{lane}, 4, 1
v_lshlrev_b32 v{t2}, 2, v{t2}
v_xor_b32 v{t1}, v{t1}, v{t2}
v_lshl_add_u32 v{d}, v{t1}, 4, v{t0}
v_add_u32 v{d+1}, 7168, v{d}
""")


def loader(p):
    A = 38
    p.e(f"""
PK_loader:
v_mov_b32 v{LANE}, v0
s_and_b32 s{A}, s{WAVE}, 3
s_and_b32 s32, s{A}, 1
s_mul_i32 s39, s{CG}, 192
""")
    p.wall(vm=False)
    p.e(f"""
s_mov_b32 s{SA+2}, 1572864
s_mov_b32 s33, 3072
s_cmp_eq_u32 s32, 0
s_cselect_b32 s{SA}, s{WQKV_}, s{GATE_}
s_cselect_b32 s{SA+1}, s{WQKV_+1}, s{GATE_+1}
s_cbranch_scc1 PK_lsel
s_mov_b32 s{SA+2}, 1409024
s_mov_b32 s33, 2752
PK_lsel:
s_and_b32 s{SA+1}, s{SA+1}, 0xffff
s_mov_b32 s{SA+3}, 0x20000
""")
    srd(p, SB, UP_, 1409024)
    srd(p, SWS, WS_, WS_SIZE)
    for j in range(3):
        p.e(f"""
v_add_u32 v1, {64*j}, v0
v_mul_u32_u24 v2, 43691, v1
v_lshrrev_b32 v2, 19, v2
v_mul_u32_u24 v3, 12, v2
v_sub_u32 v3, v1, v3
v_lshlrev_b32 v3, 4, v3
v_subrev_u32 v3, {1024*j}, v3
v_mad_u32_u24 v{4+j}, v2, s33, v3
v_mul_u32_u24 v2, 2752, v2
v_add_u32 v{8+j}, v2, v3
""")
    p.e(f"""
s_lshl_b32 s33, s33, 4
s_lshl_b32 s34, s{ROT}, 2
s_lshr_b32 s35, s{A}, 1
s_add_u32 s35, s35, s34
s_add_u32 s36, s{A}, s34
s_and_b32 s36, s36, 31
s_mul_i32 s37, s{A}, 3072
""")

    def stage(s):
        for e in range(2):
            p.e(f"s_add_u32 m0, s37, {(s % 6) * SLOT + e * 4 * 3072}")
            if s < 8:
                p.e(f"s_mul_i32 s32, s35, s33\ns_add_u32 s32, s32, s39")
                for j in range(3):
                    p.e(f"buffer_load_dwordx4 v{4+j}, s[{SA}:{SA+3}], s32 offen offset:{1024*j} lds", ("st", s))
                p.e("s_add_u32 s35, s35, 2\ns_and_b32 s35, s35, 31")
            else:
                p.e(f"s_mul_i32 s32, s36, {16*2752}\ns_add_u32 s32, s32, s39")
                for j in range(3):
                    p.e(f"buffer_load_dwordx4 v{8+j}, s[{SB}:{SB+3}], s32 offen offset:{1024*j} lds", ("st", s))
                p.e("s_add_u32 s36, s36, 4\ns_and_b32 s36, s36, 31")

    if CFG["CODEPF"]:
        p.e(f"""
s_getpc_b64 s[{SC}:{SC+1}]
PK_pc:
s_lshr_b32 s32, s2, 3
s_and_b32 s32, s32, 3
s_lshl_b32 s32, s32, 2
s_add_u32 s32, s32, s{A}
s_mul_i32 s32, s32, (PK_codeend-PK_start+15*128)/(16*128)
v_add_u32 v12, s32, v0
v_lshlrev_b32 v12, 7, v12
v_min_u32 v12, PK_codeend-PK_start-4, v12
v_and_b32 v12, 0xfffffffc, v12
s_sub_u32 s{SC}, s{SC}, PK_pc-PK_start
s_subb_u32 s{SC+1}, s{SC+1}, 0
v_mov_b32 v13, s{SC+1}
v_add_co_u32 v12, vcc, s{SC}, v12
s_nop 1
v_addc_co_u32 v13, vcc, 0, v13, vcc
s_mov_b64 exec, 0xffffffff
global_load_dword v14, v[12:13], off
s_mov_b64 exec, -1
""")
    stamp(p, 1, "start")
    stage(0)
    stamp(p, 2, "start")
    srd(p, SC, DBG_, 256)
    p.e(f"""
s_cmp_lg_u32 s{A}, 0
s_cbranch_scc1 PK_noclear
s_lshl_b32 s32, s{CG}, 4
s_add_u32 s32, s32, s{RBK}
s_lshl_b32 s32, s32, 7
s_add_u32 s32, s32, {FL1}
v_mov_b32 v12, s32
s_lshl_b32 s32, s{RBK}, 8
s_lshl_b32 s34, s{CG}, 2
s_add_u32 s32, s32, s34
s_add_u32 s32, s32, {FL2 - 64}
v_lshl_add_u32 v13, v0, 6, s32
v_cmp_le_u32 vcc, 1, v0
s_lshl_b32 s32, s{QB}, 10
s_lshl_b32 s34, s{HEAD}, 2
v_cndmask_b32 v12, v12, v13, vcc
s_add_u32 s32, s32, s34
s_add_u32 s32, s32, {FL3 - 5 * 128}
v_lshl_add_u32 v13, v0, 7, s32
v_cmp_le_u32 vcc, 5, v0
v_mov_b32 v15, 0
v_mov_b32 v16, {LWORD}
v_cndmask_b32 v12, v12, v13, vcc
s_mov_b64 exec, 0x1fff
buffer_store_dword v15, v12, s[{SWS}:{SWS+3}], 0 offen sc1
s_mov_b64 exec, 1
ds_write_b32 v16, v15
s_mov_b64 exec, -1
PK_noclear:
s_waitcnt vmcnt(0) lgkmcnt(0)
""")
    p.vm, p.lg = [], []
    stamp(p, 3, "start")
    stage(1)
    wo_voffsets(p, 12, 0, 1, 2, 3)
    srd(p, SD, WO_, 524288)
    p.e(f"s_lshl_b32 s34, s{QB}, 7\ns_lshl_b32 s32, s{A}, 14\ns_add_u32 s34, s34, s32\ns_lshl_b32 s38, s{A}, 11")

    def wodma(k0, n):
        for k in range(k0, k0 + n, 4):
            p.e(f"""
s_add_u32 m0, s38, {k*2048}
s_add_u32 s32, s34, {k*16384}
buffer_load_dwordx4 v12, s[{SD}:{SD+3}], s32 offen lds
buffer_load_dwordx4 v13, s[{SD}:{SD+3}], s32 offen offset:1024 lds
""", "wo")

    for s in range(12):
        p.wvm(("st", s))
        if s < 8: stamp(p, 4 + s, "start")
        p.e("s_barrier")
        if s == 0:
            for t in range(2, 6):
                stage(t)
            p.e(f"""
s_cmp_lg_u32 s38, 0
s_cbranch_scc1 PK_noadd
s_and_b32 s32, s2, 15
s_lshl_b32 s32, s32, 4
v_mov_b32 v15, 0
v_mov_b32 v16, 1
s_mov_b64 exec, 1
buffer_atomic_add v16, v15, s[{SC}:{SC+3}], s32 offen sc1
s_mov_b64 exec, -1
PK_noadd:
""")
            p.vm.pop()
        elif s == 1 and CFG["WPF"]:
            p.e(f"""
s_lshr_b32 s32, s38, 11
s_lshl_b32 s32, s32, 8
s_add_u32 s32, s32, s2
s_lshl_b32 s32, s32, 11
v_lshlrev_b32 v15, 7, v0
s_mov_b64 exec, 0xffff
s_cmp_ge_u32 s32, 1409024 + 0
s_cbranch_scc1 PK_pfwo
""")
            srd(p, SC, DOWN_, 1409024)
            p.e(f"""
buffer_load_dword v14, v15, s[{SC}:{SC+3}], s32 offen
s_branch PK_pfdone
PK_pfwo:
s_sub_u32 s32, s32, 1409024
buffer_load_dword v14, v15, s[{SD}:{SD+3}], s32 offen
PK_pfdone:
s_mov_b64 exec, -1
""")
            p.vm.pop()
        elif 2 <= s <= 7:
            stage(s + 4)
        elif s == 8:
            wodma(0, 12)
        elif s == 9:
            wodma(12, 12)
        elif s == 10:
            p.e(f"""
s_cmp_lg_u32 s38, 0
s_cbranch_scc1 PK_nof1
s_lshl_b32 s32, s{CG}, 4
s_add_u32 s32, s32, s{RBK}
s_lshl_b32 s32, s32, 7
s_add_u32 s32, s32, {FL1}
""")
            flag(p, 32, 15, 16)
            p.vm.pop()
            p.e("PK_nof1:")
            wodma(24, 8)
    p.e(f"s_cmp_lg_u32 s38, 0\ns_cbranch_scc1 PK_lwait")
    srd(p, SC, DBG_, 256)
    p.e(f"v_and_b32 v1, 15, v0\nv_lshlrev_b32 v2, 4, v1")
    poll(p, "PK_p0", 2, 3, SC, 16, "le")
    p.e(f"""
v_lshrrev_b32 v2, 4, v0
v_min_u32 v2, 2, v2
v_lshlrev_b32 v2, 4, v2
s_lshr_b32 s32, s{HEAD}, 1
v_add_u32 v2, s32, v2
v_mul_u32_u24 v2, 21846, v2
v_lshrrev_b32 v2, 16, v2
v_lshl_add_u32 v2, v2, 4, v1
v_lshlrev_b32 v2, 7, v2
v_add_u32 v2, {FL1}, v2
""")
    poll(p, "PK_p1", 2, 3, SWS, 1)
    p.e(f"""
v_mov_b32 v1, {LWORD}
v_mov_b32 v2, 1
ds_write_b32 v1, v2
s_branch PK_lgo
PK_lwait:
v_mov_b32 v1, {LWORD}
s_mov_b32 s{CNT}, {SPIN * 8}
PK_lw:
ds_read_b32 v2, v1
s_waitcnt lgkmcnt(0)
v_cmp_eq_u32 vcc, 1, v2
s_sub_u32 s{CNT}, s{CNT}, 1
s_cmp_eq_u64 vcc, -1
s_cbranch_scc1 PK_lgo
s_sleep 1
s_cmp_lg_u32 s{CNT}, 0
s_cbranch_scc1 PK_lw
PK_lgo:
s_waitcnt vmcnt(0) lgkmcnt(0)
""")
    p.vm, p.lg = [], []
    stamp(p, 4)
    att_issue(p)
    stamp(p, 5)
    p.e("s_barrier")
    if CFG["PRIO"]:
        p.e("s_setprio 1")


def kload(p, st):
    p.e(f"buffer_load_dwordx4 {vr(K+4*st,4)}, v{LN16}, s[{SA}:{SA+3}], s33 offen {LD}\ns_add_u32 s33, s33, 1024")


def vload(p, st):
    p.e(f"""
s_mov_b64 exec, s[{VEXEC}:{VEXEC+1}]
buffer_load_dwordx4 {vr(V+8*st,4)}, v{VOFF}, s[{SB}:{SB+3}], s34 offen {LD}
buffer_load_dwordx4 {vr(V+8*st+4,4)}, v{VOFF}, s[{SB}:{SB+3}], s34 offen offset:512 {LD}
s_mov_b64 exec, -1
s_add_u32 s34, s34, 1024
""")


def vones(p, n):
    if CFG["ZROWS"]:
        p.e(f"v_and_b32 v{U0}, 27, v{LANE}\nv_cmp_eq_u32 vcc, 16, v{U0}\nv_mov_b32 v{U0}, s{ONES}\ns_nop 0\nv_cndmask_b32 v{V}, 0, v{U0}, vcc")
    else:
        p.e(f"v_mov_b32 v{V}, s{ONES}")
    for r in range(1, n):
        p.e(f"v_mov_b32 v{V+r}, v{V}")


def att_issue(p):
    NA, NB_ = CFG["NA"], CFG["NB"]
    p.e(f"""
v_lshlrev_b32 v{LN16}, 4, v{LANE}
v_lshrrev_b32 v{U0}, 5, v{LANE}
v_and_b32 v{U0+1}, 15, v{LANE}
v_lshlrev_b32 v{U0+1}, 4, v{U0+1}
v_lshl_add_u32 v{VOFF}, v{U0}, 8, v{U0+1}
v_and_b32 v{U0+1}, 31, v{LANE}
v_lshlrev_b32 v{U0+1}, 10, v{U0+1}
v_lshl_add_u32 v{XO}, v{U0}, 4, v{U0+1}
s_lshl_b32 s36, s{HEAD}, 16
""")
    srdn(p, SA, WS_, 65536, 36, KF)
    srdn(p, SB, WS_, 65536, 36, VF)
    srd(p, SC, X_, 2097152)
    p.e(f"""
s_lshl_b32 s32, s{HEAD}, 16
s_lshr_b32 s33, s{WAVE}, 2
s_lshl_b32 s33, s33, 15
s_add_u32 s32, s32, s33
s_lshl_b32 s33, s{QB}, 7
s_add_u32 s32, s32, s33
s_and_b32 s33, s{WAVE}, 3
s_lshl_b32 s33, s33, 5
s_add_u32 s39, s32, s33
buffer_load_dwordx4 {vr(XR,4)}, v{XO}, s[{SC}:{SC+3}], s39 offen
s_mul_i32 s33, s{KQ}, {NA}
s_cmp_eq_u32 s{KQ}, 3
s_cselect_b32 s32, {NB_-NA}, 0
s_add_u32 s33, s33, s32
s_cmp_ge_u32 s{KQ}, 2
s_cselect_b32 s35, {NB_//NS}, {NA//NS}
s_lshl_b32 s33, s33, 10
s_mov_b32 s34, s33
s_lshl_b32 s{QT0}, s{QB}, 3
s_lshl_b32 s32, s{QH}, 2
s_add_u32 s{QT0}, s{QT0}, s32
""")
    for j in range(4):
        p.e(f"""
s_add_u32 s32, s{KQ}, {j}
s_and_b32 s32, s32, 3
s_add_u32 s32, s32, s{QT0}
s_lshl_b32 s32, s32, 10
s_add_u32 s32, s32, s36
buffer_load_dwordx4 {vr(Q+4*j,4)}, v{LN16}, s[{SWS}:{SWS+3}], s32 offen {LD}
""")
    vones(p, 8 * NS)
    for st in range(NS):
        kload(p, st)
        if st < NS - 1:
            vload(p, st)
    p.e(f"v_mov_b32 v{IDX}, 0xdddddddd")
    for r in range(64):
        p.e(f"v_mov_b32 v{OACC+r}, 0")


def attention(p):
    NA, NB_ = CFG["NA"], CFG["NB"]
    assert 2 * (NA + NB_) == 64 and NA % NS == NB_ % NS and NA % NS in (0, 2)
    p.e("PK_join:")
    tr_lane_base(p, U0, LANE, 128, U0 + 1, U0 + 2, xor_half=True)
    p.e(f"""
s_and_b32 s32, s{WAVE}, 3
s_lshl_b32 s37, s32, 5
v_xor_b32 v{U0}, s37, v{U0}
s_lshl_b32 s37, s32, 14
v_add_u32 v{U0}, s37, v{U0}
v_xor_b32 v{U0+1}, 64, v{U0}
""")
    for i in range(8):
        for a in range(2):
            w = WO + 8 * i + 4 * a
            p.e(f"ds_read_b64_tr_b16 {vr(w,2)}, v{U0+a} offset:{i*2048}\nds_read_b64_tr_b16 {vr(w+2,2)}, v{U0+a} offset:{i*2048+512}")
    p.e("s_waitcnt lgkmcnt(0)\ns_barrier")
    p.lg = []
    E = lambda b, r: f"v_exp_f32 v{S+16*b+r}, v{S+16*b+r}"
    p.e(f"s_waitcnt vmcnt({3*NS-5})")
    p.e(f"v_mfma_f32_32x32x16_bf16 {vr(S,16)}, {vr(K,4)}, {vr(Q,4)}, 0")
    p.e(f"""
s_cmp_ge_u32 s{WAVE}, 4
s_cbranch_scc1 PK_nof2
s_lshl_b32 s32, s{TT}, 6
s_lshl_b32 s37, s{CG}, 2
s_add_u32 s32, s32, s37
s_add_u32 s32, s32, {FL2}
""")
    flag(p, 32, U0, U0 + 1)
    p.e("PK_nof2:")
    vload(p, NS - 1)
    p.e("s_nop 4")
    p.e(E(0, 0)); p.e(E(0, 1))
    stamp(p, 6)

    def blocks(n):
        for i in range(n):
            st, t, b = i // 4, i % 4, i % 2
            nst, nt = ((i + 1) // 4) % NS, (i + 1) % 4
            for r in (2, 3, 4): p.e(E(b, r))
            if t == 3:
                p.e(f"s_waitcnt vmcnt({3*(NS-2)})")
            p.e(f"v_mfma_f32_32x32x16_bf16 {vr(S+16*(1-b),16)}, {vr(K+4*nst,4)}, {vr(Q+4*nt,4)}, 0")
            if t == 3:
                kload(p, st)
            for r in range(5, 10): p.e(E(b, r))
            p.e(f"v_smfmac_f32_32x32x32_bf16 {vr(OACC+16*t,16)}, {vr(V+8*st,4)}, {vr(S+16*b,8)}, v{IDX}")
            for r in range(10, 16): p.e(E(b, r))
            p.e(E(1 - b, 0)); p.e(E(1 - b, 1))
            p.e(f"v_smfmac_f32_32x32x32_bf16 {vr(OACC+16*t,16)}, {vr(V+8*st+4,4)}, {vr(S+16*b+8,8)}, v{IDX}")
            if t == 3:
                vload(p, st)

    p.e("PK_loop:")
    blocks(4 * NS)
    p.e("s_sub_u32 s35, s35, 1\ns_cmp_lg_u32 s35, 0\ns_cbranch_scc1 PK_loop")
    if NA % NS:
        blocks(4 * (NA % NS))
    stamp(p, 7)
    p.e(f"s_lshl_b32 s38, s{QH}, 2\nv_lshlrev_b32 v{U0+1}, 2, v{LANE}\ns_nop 7")
    for j in range(1, 4):
        a = OACC + 16 * j
        p.e(f"""
s_add_u32 s32, s{KQ}, {j}
s_and_b32 s32, s32, 3
s_add_u32 s32, s32, s38
s_mul_i32 s32, s32, {3*2304}
s_add_u32 s32, s32, {RB + (j-1)*2304}
v_add_u32 v{U0}, s32, v{LN16}
v_add_u32 v{U0+2}, s32, v{U0+1}
ds_write_b128 v{U0}, {vr(a,4)}
ds_write_b128 v{U0}, {vr(a+4,4)} offset:1024
ds_write_b32 v{U0+2}, v{a+8} offset:2048
""")
    p.e(f"s_cmp_ge_u32 s{WAVE}, 4\ns_cbranch_scc1 PK_gdone")


def gphase(p):
    GV0, GT0 = U0, U0 + 2
    DEP = CFG["GDEPTH"]
    if CFG["PRIO"]:
        p.e("s_setprio 0")
    p.e(f"""
v_and_b32 v{U0}, 31, v{LANE}
v_and_b32 v{U0+1}, 15, v{U0}
v_cmp_eq_u32 vcc, 15, v{U0+1}
s_lshl_b32 s32, s{HEAD}, 7
s_add_u32 s32, s32, {FL2}
v_subrev_u32 v{U0+1}, 1, v{U0}
v_cndmask_b32 v{U0}, v{U0}, v{U0+1}, vcc
v_lshl_add_u32 v{U0}, v{U0}, 2, s32
""")
    poll(p, "PK_p2", U0, U0 + 1, SWS, 1)
    p.e(f"s_waitcnt lgkmcnt(0)\ns_mul_i32 s36, s{HEAD}, {2*88064}")
    p.lg = []
    srd(p, SC, DOWN_, 1409024)
    srdn(p, SD, WS_, 88064, 36, HF)
    srdn(p, 88, WS_, 88064, 36, HF + 88064)
    wo_voffsets(p, GV0, LANE, GT0, GT0 + 1, GT0 + 2)
    tr_lane_base(p, GT0, LANE, 128, GT0 + 1, GT0 + 2, xor_half=True)
    p.e(f"""
s_lshl_b32 s37, s{WAVE}, 14
s_add_u32 s37, s37, {GB}
v_add_u32 v{GT0}, s37, v{GT0}
v_xor_b32 v{GT0+1}, 64, v{GT0}
s_and_b32 s32, s{HEAD}, 3
s_lshl_b32 s32, s32, 1
s_add_u32 s32, s32, s{QB}
s_and_b32 s32, s32, 7
s_mul_i32 s32, s32, 22
s_lshr_b32 s32, s32, 3
s_lshl_b32 s32, s32, 2
s_add_u32 s33, s32, s{WAVE}
s_lshl_b32 s38, s{QB}, 7
""")

    def loads(i):
        sl = i % 8
        p.e(f"""
s_add_u32 m0, s37, {sl*2048}
s_lshl_b32 s32, s33, 10
s_lshl_b32 s34, s33, 14
s_add_u32 s34, s34, s38
buffer_load_dwordx4 {vr(GH+8*sl,4)}, v{LN16}, s[{SD}:{SD+3}], s32 offen {LD}
buffer_load_dwordx4 v{GV0}, s[{SC}:{SC+3}], s34 offen lds
buffer_load_dwordx4 v{GV0+1}, s[{SC}:{SC+3}], s34 offen offset:1024 lds
buffer_load_dwordx4 {vr(GH+8*sl+4,4)}, v{LN16}, s[88:91], s32 offen {LD}
s_add_u32 s33, s33, 4
s_cmp_ge_u32 s33, 88
s_cselect_b32 s32, 88, 0
s_sub_u32 s33, s33, s32
""", ("g", i))

    def greads(i):
        sl, w = i % 8, GW + 8 * (i & 1)
        for ct in range(2):
            for q in range(2):
                p.e(f"ds_read_b64_tr_b16 {vr(w+4*ct+2*q,2)}, v{GT0+ct} offset:{sl*2048+q*512}", ("gr", i))

    N = 22
    for i in range(DEP):
        loads(i)
    p.wvm(("g", 0))
    greads(0)
    for i in range(N):
        if i + 1 < N:
            p.wvm(("g", i + 1))
            greads(i + 1)
        if i + DEP < N:
            loads(i + DEP)
        p.wlg(("gr", i))
        for tt in range(2):
            for ct in range(2):
                a = GACC + 16 * (2 * tt + ct)
                c = "0" if i == 0 else vr(a, 16)
                p.e(f"v_mfma_f32_32x32x16_bf16 {vr(a,16)}, {vr(GW+8*(i&1)+4*ct,4)}, {vr(GH+8*(i%8)+4*tt,4)}, {c}")
    p.e(f"v_add_u32 v{U0}, s37, v{LN16}\ns_nop 10")
    for q in range(16):
        p.e(f"ds_write_b128 v{U0}, {vr(GACC+4*q,4)} offset:{1024*q}")
    p.e("PK_gdone:")


def tail(p):
    stamp(p, 8)
    p.e("s_waitcnt vmcnt(0) lgkmcnt(0)\ns_barrier")
    p.vm, p.lg = [], []
    stamp(p, 9)
    p.e(f"""
s_lshl_b32 s32, s{QH}, 2
s_add_u32 s32, s32, s{KQ}
s_mul_i32 s32, s32, {3*2304}
s_add_u32 s32, s32, {RB}
v_lshlrev_b32 v{U0+1}, 2, v{LANE}
v_add_u32 v{U0}, s32, v{LN16}
v_add_u32 v{U0+1}, s32, v{U0+1}
""")
    for d in range(3):
        a = OACC + 16 * (d + 1)
        p.e(f"""
ds_read_b128 {vr(a,4)}, v{U0} offset:{d*2304}
ds_read_b128 {vr(a+4,4)}, v{U0} offset:{d*2304+1024}
ds_read_b32 v{a+8}, v{U0+1} offset:{d*2304+2048}
""", "o")
    p.e(f"s_lshl_b32 s32, s{WAVE}, 11\ns_add_u32 s32, s32, {GB}\nv_add_u32 v{U0}, s32, v{LN16}")
    p.wlg("o")
    FP = Q
    for a in range(4):
        for q in range(2):
            p.e(f"ds_read_b128 {vr(FP+8*a+4*q,4)}, v{U0} offset:{16384*a+1024*q}", "f")
    for r in range(9):
        p.e(f"v_add_f32 v{OACC+r}, v{OACC+r}, v{OACC+16+r}\nv_add_f32 v{OACC+32+r}, v{OACC+32+r}, v{OACC+48+r}")
    for r in range(9):
        p.e(f"v_add_f32 v{OACC+r}, v{OACC+r}, v{OACC+32+r}")
    p.e(f"""
v_max3_f32 v{U0}, abs(v{OACC}), abs(v{OACC+1}), abs(v{OACC+2})
v_max3_f32 v{U0}, v{U0}, abs(v{OACC+3}), abs(v{OACC+4})
v_max3_f32 v{U0}, v{U0}, abs(v{OACC+5}), abs(v{OACC+6})
v_max_f32 v{U0}, v{U0}, abs(v{OACC+7})
s_mov_b32 s32, {fbits(2.0**-60)}
s_mov_b32 s33, {fbits(2.0**60)}
s_mov_b32 s34, {fbits(2.0**126)}
v_cmp_le_f32 s[88:89], s32, v{OACC+8}
v_cmp_ge_f32 s[90:91], s33, v{OACC+8}
v_cmp_ge_f32 s[92:93], s34, v{U0}
s_add_u32 s38, s{QT0}, s{KQ}
s_lshl_b32 s38, s38, 5
s_and_b64 s[88:89], s[88:89], s[90:91]
s_and_b64 s[88:89], s[88:89], s[92:93]
s_cmp_eq_u64 s[88:89], -1
s_cbranch_scc0 PK_slow
PK_store:
v_rcp_f32 v{U0}, v{OACC+8}
s_add_u32 s38, s38, s{HEAD}
s_lshl_b32 s32, s38, 10
s_add_u32 s32, s32, {OF}
""")
    for r in range(8):
        p.e(f"v_mul_f32 v{OACC+r}, v{OACC+r}, v{U0}")
    for r in range(4):
        p.e(f"v_cvt_pk_bf16_f32 v{OACC+r}, v{OACC+2*r}, v{OACC+2*r+1}")
    p.e(f"buffer_store_dwordx4 {vr(OACC,4)}, v{LN16}, s[{SWS}:{SWS+3}], s32 offen {ST}")
    p.e("s_waitcnt lgkmcnt(0)\ns_barrier")
    p.lg = []
    G, XF = FP, FP + 8
    for r in range(8):
        p.e(f"v_add_f32 v{FP+r}, v{FP+r}, v{FP+8+r}\nv_add_f32 v{FP+16+r}, v{FP+16+r}, v{FP+24+r}")
    for r in range(8):
        p.e(f"v_add_f32 v{G+r}, v{FP+r}, v{FP+16+r}")
    for r in range(8):
        p.e(f"v_mul_f32 v{XF+r}, s{NLOG2E}, v{G+r}")
    for r in range(8):
        p.e(f"v_exp_f32 v{XF+r}, v{XF+r}")
    p.e(f"""
s_lshl_b32 s32, s38, 2
s_add_u32 s32, s32, {FL3}
s_waitcnt vmcnt(0)
""")
    p.vm = []
    flag(p, 32, U0, U0 + 1)
    for r in range(8):
        p.e(f"v_add_f32 v{XF+r}, 1.0, v{XF+r}")
    for r in range(8):
        p.e(f"v_rcp_f32 v{XF+r}, v{XF+r}")
    p.e(f"""
s_lshl_b32 s36, s{HEAD}, 1
s_lshr_b32 s32, s{WAVE}, 2
s_add_u32 s36, s36, s32
s_lshl_b32 s36, s36, 5
s_and_b32 s32, s{WAVE}, 3
s_lshl_b32 s32, s32, 3
s_add_u32 s36, s36, s32
s_lshl_b32 s32, s36, 2
s_add_u32 s32, s32, {FL3}
v_and_b32 v{U0}, 7, v{LANE}
v_lshl_add_u32 v{U0}, v{U0}, 2, s32
""")
    for r in range(8):
        p.e(f"v_mul_f32 v{G+r}, v{G+r}, v{XF+r}")
    for r in range(4):
        p.e(f"v_lshlrev_b32 v{XF+2*r}, 16, v{XR+r}\nv_and_b32 v{XF+2*r+1}, s{MASKHI}, v{XR+r}")
    stamp(p, 10)
    poll(p, "PK_p3", U0, U0 + 1, SWS, 1)
    stamp(p, 11)
    OB, TA = V, OACC
    p.e(f"s_lshl_b32 s36, s36, 10\ns_add_u32 s36, s36, {OF}\ns_add_u32 s32, s36, 4096")
    for i in range(8):
        p.e(f"buffer_load_dwordx4 {vr(OB+4*i,4)}, v{LN16}, s[{SWS}:{SWS+3}], s{36 if i < 4 else 32} offen offset:{1024*(i%4)} {LD}", ("o", i))
    srd(p, SC, OUT_, 2097152)
    for j in range(1, 4):
        p.e(f"s_xor_b32 s33, s{WAVE}, {j}\ns_mul_i32 s33, s33, 6144\ns_add_u32 s33, s33, {RB + (j-1)*2048}\nv_add_u32 v{U0+j}, s33, v{LN16}")
    p.e(f"s_mul_i32 s33, s{WAVE}, 6144\ns_add_u32 s33, s33, {RB}\nv_add_u32 v{U0}, s33, v{LN16}")
    for i in range(8):
        p.wvm(("o", i))
        for a in range(2):
            c = "0" if i == 0 else vr(TA + 16 * a, 16)
            p.e(f"v_mfma_f32_32x32x16_bf16 {vr(TA+16*a,16)}, {vr(WO+8*i+4*a,4)}, {vr(OB+4*i,4)}, {c}")
    p.e("s_nop 10")
    for j in range(1, 4):
        p.e(f"ds_write_b128 v{U0+j}, {vr(TA+8*j,4)}\nds_write_b128 v{U0+j}, {vr(TA+8*j+4,4)} offset:1024")
    p.e("s_waitcnt lgkmcnt(0)\ns_barrier")
    p.lg = []
    for j in range(1, 4):
        p.e(f"ds_read_b128 {vr(TA+8*j,4)}, v{U0} offset:{(j-1)*2048}\nds_read_b128 {vr(TA+8*j+4,4)}, v{U0} offset:{(j-1)*2048+1024}")
    p.wall(vm=False)
    for r in range(8):
        p.e(f"v_add_f32 v{TA+r}, v{TA+r}, v{TA+8+r}\nv_add_f32 v{TA+16+r}, v{TA+16+r}, v{TA+24+r}")
    for r in range(8):
        p.e(f"v_add_f32 v{TA+r}, v{TA+r}, v{TA+16+r}")
    for r in range(8):
        p.e(f"v_fma_f32 v{TA+r}, v{TA+r}, v{G+r}, v{XF+r}")
    for r in range(4):
        p.e(f"v_cvt_pk_bf16_f32 v{TA+r}, v{TA+2*r}, v{TA+2*r+1}")
    p.e(f"buffer_store_dwordx4 {vr(TA,4)}, v{XO}, s[{SC}:{SC+3}], s39 offen")
    stamp_out(p, 0, 12, wave=f"s{WAVE}", ws=WS_)
    p.e("PK_end:\ns_endpgm")


def slow(p):
    M = U0 + 3
    p.e(f"""
PK_slow:
s_waitcnt lgkmcnt(0)
s_add_u32 s32, s{QT0}, s{KQ}
s_lshl_b32 s32, s32, 10
s_lshl_b32 s33, s{HEAD}, 16
s_add_u32 s32, s32, s33
buffer_load_dwordx4 {vr(S+16,4)}, v{LN16}, s[{SWS}:{SWS+3}], s32 offen {LD}
s_mov_b32 s33, 0
s_mov_b32 s35, 64
v_mov_b32 v{M}, 0xff800000
""")
    KK = S + 20
    kl = f"buffer_load_dwordx4 {vr(KK,4)}, v{LN16}, s[{SA}:{SA+3}], s33 offen {LD}\ns_add_u32 s33, s33, 1024"
    vones(p, 8)
    p.e("PK_slow1:")
    p.e(kl)
    p.e(f"s_waitcnt vmcnt(0)\nv_mfma_f32_32x32x16_bf16 {vr(S,16)}, {vr(KK,4)}, {vr(S+16,4)}, 0\ns_nop 11")
    for r in range(0, 16, 2):
        p.e(f"v_max3_f32 v{M}, v{M}, v{S+r}, v{S+r+1}")
    p.e(f"""
s_sub_u32 s35, s35, 1
s_cmp_lg_u32 s35, 0
s_cbranch_scc1 PK_slow1
v_mov_b32 v{U0}, v{M}
s_nop 1
v_permlane32_swap_b32 v{M}, v{U0}
v_max_f32 v{M}, v{M}, v{U0}
s_mov_b32 s33, 0
s_mov_b32 s34, 0
s_mov_b32 s35, 64
""")
    for r in range(16):
        p.e(f"v_mov_b32 v{OACC+r}, 0")
    p.e("PK_slow2:")
    p.e(kl)
    vload(p, 0)
    p.e(f"s_waitcnt vmcnt(0)\nv_mfma_f32_32x32x16_bf16 {vr(S,16)}, {vr(KK,4)}, {vr(S+16,4)}, 0\ns_nop 11")
    for r in range(16):
        p.e(f"v_sub_f32 v{S+r}, v{S+r}, v{M}")
    for r in range(16):
        p.e(f"v_exp_f32 v{S+r}, v{S+r}")
    p.e(f"""
s_nop 1
v_smfmac_f32_32x32x32_bf16 {vr(OACC,16)}, {vr(V,4)}, {vr(S,8)}, v{IDX}
v_smfmac_f32_32x32x32_bf16 {vr(OACC,16)}, {vr(V+4,4)}, {vr(S+8,8)}, v{IDX}
s_sub_u32 s35, s35, 1
s_cmp_lg_u32 s35, 0
s_cbranch_scc1 PK_slow2
s_nop 11
s_branch PK_store
PK_codeend:
""")


def build():
    a, b, c, d = P(), P(), P(), P()
    entry(a)
    b.lg = list(a.lg); c.lg = list(a.lg)
    compute(b)
    loader(c)
    attention(d); gphase(d); tail(d); slow(d)
    L = a.l + b.l + c.l + d.l
    ns = [f"PK_noscale{i}" for i in range(3)]
    vt = [f"PK_vtile{i}" for i in range(3)]
    ok = ["PK_p0_ok", "PK_p1_ok", "PK_p2_ok", "PK_p3_ok"]
    lp = {"PK_loop": 1}
    bad = check(trace(L, ok, lp), "A.q") + check(trace(L, ok + ns, lp), "A.k") + check(trace(L, ok + ns + vt + ["PK_hdone"], lp), "A.v")
    bw = ["PK_loader", "PK_nof2", "PK_gdone"]
    bad += check(trace(L, ok + bw, lp), "B.4")
    bad += check(trace(L, ok + bw + ["PK_noclear", "PK_noadd", "PK_nof1", "PK_lwait", "PK_lgo", "PK_pfwo", "PK_lsel"], lp), "B.5")
    bad += check(trace(L, ok + bw + ["PK_slow"], {"PK_slow1": 1, "PK_slow2": 1}), "slow")
    return a.text() + b.text() + c.text() + d.text(), bad


if __name__ == "__main__":
    import sys
    NAME = "recurrent_scan__mha_block__swiglu_ffn__prompt"
    out = sys.argv[1] if len(sys.argv) > 1 else f"cdna_kernels/{NAME}.s"
    ref = open(f"cdna_kernels/{NAME}.s.ref").read().splitlines()
    head = [l for l in ref if l.startswith(";") and "@launch" not in l]
    body, bad = build()
    k = NAME + "_kernel"
    txt = "\n".join(head) + f"\n; @launch grid=(256,1,1) block=(512,1,1) lds={LDS}\n"
    txt += f'.amdgcn_target "amdgcn-amd-amdhsa--gfx950"\n.text\n.globl {k}\n.p2align 8\n.type {k},@function\n{k}:\n{body}'
    txt += f""".section .rodata,"a"
.p2align 6
.amdhsa_kernel {k}
  .amdhsa_next_free_vgpr 256
  .amdhsa_next_free_sgpr 102
  .amdhsa_accum_offset 256
  .amdhsa_group_segment_fixed_size 0
  .amdhsa_kernarg_size 80
  .amdhsa_user_sgpr_count 2
  .amdhsa_user_sgpr_kernarg_segment_ptr 1
  .amdhsa_system_sgpr_workgroup_id_x 1
.end_amdhsa_kernel
"""
    open(out, "w").write(txt)
    print("written", out, len(txt), "bytes; checker problems:", bad, CFG)
```
